```python
import torch

def _softmax(x, axis=-1):
    return torch.softmax(x, dim=axis)
def _gelu(x):
    return torch.nn.functional.gelu(x, approximate="tanh")
def _silu(x):
    return torch.nn.functional.silu(x)
def _sigmoid(x):
    return torch.sigmoid(x)
def _layernorm(x, axis=-1, eps=1e-5):
    m = x.mean(dim=axis, keepdim=True)
    v = x.var(dim=axis, keepdim=True, unbiased=False)
    return (x - m) / torch.sqrt(v + eps)
def _scatter_add(tgt, idx, src, axis=0):
    return tgt.clone().index_add_(axis, idx, src)
def _segment_sum(src, seg, n):
    out = torch.zeros((n,) + src.shape[1:], dtype=src.dtype)
    return out.index_add_(0, seg, src)
def _pad(x, pw):
    flat = tuple(v for pair in reversed(pw) for v in pair)
    return torch.nn.functional.pad(x, flat)

kernel_name = 'concat_heads__gqa_block_cached__gqa_block_cached__near_ridge'

def setup_inputs():

    _w = (lambda a: (lambda t: t.to(torch.bfloat16) if t.is_floating_point() else t)(torch.as_tensor(a)))
    def _A_setup():
        B, Sq, D = 16, 48, 448
        Hq, Hkv, Sk, Dh = 16, 8, 48, 256
        assert Hq % Hkv == 0, (Hq, Hkv)
        return {
            "x": _w((lambda *s: torch.randn(*s, dtype=torch.bfloat16) * 0.8)(B, Sq, D)),
            "k_cache": _w((lambda *s: torch.randn(*s, dtype=torch.bfloat16) * 0.8)(B, Hkv, Sk, Dh)),
            "v_cache": _w((lambda *s: torch.randn(*s, dtype=torch.bfloat16) * 0.05)(B, Hkv, Sk, Dh)),
            "wq": _w((lambda *s: torch.randn(*s, dtype=torch.bfloat16) * 0.8)(D, Hq * Dh) * (D ** -0.5)),
            "wo": _w((lambda *s: torch.randn(*s, dtype=torch.bfloat16) * 0.05)(Hq * Dh, D) * ((Hq * Dh) ** -0.5)),
        }
    _A_in = _A_setup()

    def _B_setup():
        B, Sq, D = 16, 48, 448
        Hq, Hkv, Sk, Dh = 16, 8, 48, 256
        assert Hq % Hkv == 0, (Hq, Hkv)
        return {
            "x": _w((lambda *s: torch.randn(*s, dtype=torch.bfloat16) * 0.8)(B, Sq, D)),
            "k_cache": _w((lambda *s: torch.randn(*s, dtype=torch.bfloat16) * 0.8)(B, Hkv, Sk, Dh)),
            "v_cache": _w((lambda *s: torch.randn(*s, dtype=torch.bfloat16) * 0.05)(B, Hkv, Sk, Dh)),
            "wq": _w((lambda *s: torch.randn(*s, dtype=torch.bfloat16) * 0.8)(D, Hq * Dh) * (D ** -0.5)),
            "wo": _w((lambda *s: torch.randn(*s, dtype=torch.bfloat16) * 0.05)(Hq * Dh, D) * ((Hq * Dh) ** -0.5)),
        }
    _B_in = _B_setup()

    return {
        "A_x": _A_in["x"],
        "A_k_cache": _A_in["k_cache"],
        "A_v_cache": _A_in["v_cache"],
        "A_wq": _A_in["wq"],
        "A_wo": _A_in["wo"],
        "B_x": _B_in["x"],
        "B_k_cache": _B_in["k_cache"],
        "B_v_cache": _B_in["v_cache"],
        "B_wq": _B_in["wq"],
        "B_wo": _B_in["wo"],
    }

def reference(A_x, A_k_cache, A_v_cache, A_wq, A_wo, B_x, B_k_cache, B_v_cache, B_wq, B_wo):
    def _A_ref(x, k_cache, v_cache, wq, wo):
        B, Sq, D = x.shape
        Hq, Dh = 16, 256
        Hkv = k_cache.shape[1]
        rep = Hq // Hkv
        q = (lambda x, *d: x.permute(*d))((x @ wq).reshape(B, Sq, Hq, Dh), 0, 2, 1, 3)
        k = (lambda x, n, axis: torch.repeat_interleave(x, n, dim=axis))(k_cache, rep, axis=1)
        v = (lambda x, n, axis: torch.repeat_interleave(x, n, dim=axis))(v_cache, rep, axis=1)
        scores = torch.einsum("bhqd,bhkd->bhqk", q, k) * (Dh ** -0.5)
        p = _softmax(scores, axis=-1)
        o = torch.einsum("bhqk,bhkd->bhqd", p, v)
        return (lambda x, *d: x.permute(*d))(o, 0, 2, 1, 3).reshape(B, Sq, Hq * Dh) @ wo

    def _B_ref(x, k_cache, v_cache, wq, wo):
        B, Sq, D = x.shape
        Hq, Dh = 16, 256
        Hkv = k_cache.shape[1]
        rep = Hq // Hkv
        q = (lambda x, *d: x.permute(*d))((x @ wq).reshape(B, Sq, Hq, Dh), 0, 2, 1, 3)
        k = (lambda x, n, axis: torch.repeat_interleave(x, n, dim=axis))(k_cache, rep, axis=1)
        v = (lambda x, n, axis: torch.repeat_interleave(x, n, dim=axis))(v_cache, rep, axis=1)
        scores = torch.einsum("bhqd,bhkd->bhqk", q, k) * (Dh ** -0.5)
        p = _softmax(scores, axis=-1)
        o = torch.einsum("bhqk,bhkd->bhqd", p, v)
        return (lambda x, *d: x.permute(*d))(o, 0, 2, 1, 3).reshape(B, Sq, Hq * Dh) @ wo

    a = _A_ref(A_x, A_k_cache, A_v_cache, A_wq, A_wo)
    b = _B_ref(B_x, B_k_cache, B_v_cache, B_wq, B_wo)
    return torch.concatenate([a, b], axis=-1)
```

```python
import sys
L = []
def e(s=""): L.append(s)

KERNARG_OUT, KERNARG_WS = 80, 96

def gen_k1():
    e(".p2align 8")
    e(".globl attn_kernel")
    e(".type attn_kernel,@function")
    e("attn_kernel:")
    e("  s_cmp_ge_u32 s2, 256")
    e("  s_cbranch_scc1 K1_END")
    e("  s_and_b32 s28, s2, 7            ; hk")
    e("  s_lshr_b32 s29, s2, 3")
    e("  s_and_b32 s29, s29, 1           ; hb")
    e("  s_lshr_b32 s30, s2, 4")
    e("  s_and_b32 s30, s30, 7           ; bp")
    e("  s_lshr_b32 s31, s2, 7           ; side")
    e("  s_lshl_b32 s32, s28, 1")
    e("  s_add_u32 s32, s32, s29         ; h")
    e("  s_mul_i32 s33, s31, 40")
    e("  s_load_dwordx8 s[36:43], s[0:1], s33")
    e("  s_load_dwordx2 s[44:45], s[0:1], %d" % KERNARG_WS)
    e("  v_lshrrev_b32 v1, 6, v0")
    e("  v_and_b32 v0, 63, v0            ; lane")
    e("  v_readfirstlane_b32 s34, v1")
    e("  s_waitcnt lgkmcnt(0)")
    for (d, src, n) in ((8, 36, 688128), (16, 38, 3145728), (20, 40, 3145728), (12, 42, 3670016), (24, 44, 12582912)):
        e(f"  s_mov_b32 s{d}, s{src}")
        e(f"  s_mov_b32 s{d+1}, s{src+1}")
        e(f"  s_mov_b32 s{d+2}, {n}")
        e(f"  s_mov_b32 s{d+3}, 0x00020000")
    e("  v_and_b32 v2, 15, v0            ; i = l%16")
    e("  v_lshrrev_b32 v3, 4, v0         ; g = l/16")
    KB, SB, SBS, QB, VB = 0, 49152, 22528, 114688, 49152
    XS = 16384
    e("  ; K prefetch")
    e("  v_lshrrev_b32 v4, 5, v0         ; rr")
    e("  v_and_b32 v5, 31, v0            ; p")
    e("  s_mul_i32 s35, s34, 12")
    e("  s_lshl_b32 s46, s30, 1          ; 2bp")
    e("  s_lshl_b32 s46, s46, 3")
    e("  s_add_u32 s46, s46, s28         ; (2bp*8+hk)")
    e("  s_mul_i32 s46, s46, 24576")
    for j in range(6):
        e(f"  v_add_u32 v6, s35, v4")
        if j: e(f"  v_add_u32 v6, {2*j}, v6       ; R")
        e("  v_cmp_le_u32 vcc, 48, v6")
        e("  v_subrev_u32 v7, 48, v6")
        e("  s_nop 0")
        e("  v_cndmask_b32 v7, v6, v7, vcc   ; key")
        e("  v_mov_b32 v8, 0")
        e("  v_mov_b32 v9, 196608")
        e("  v_cndmask_b32 v8, v8, v9, vcc")
        e("  v_and_b32 v9, 15, v7")
        e("  v_xor_b32 v9, v5, v9            ; c")
        e("  v_lshlrev_b32 v9, 4, v9")
        e("  v_lshl_add_u32 v9, v7, 9, v9")
        e("  v_add_u32 v9, v9, v8")
        e(f"  s_mul_i32 s47, s34, 6144")
        e(f"  s_add_u32 s47, s47, {KB + j*1024}")
        e("  s_mov_b32 m0, s47")
        e("  s_nop 0")
        e("  buffer_load_dwordx4 v9, s[16:19], s46 offen lds")
    e("  s_cmp_ge_u32 s34, 6")
    e("  s_cselect_b32 s47, 6, 0")
    e("  s_sub_u32 s47, s34, s47         ; w%6")
    e("  s_lshl_b32 s48, s47, 4          ; rowbase")
    e("  v_lshrrev_b32 v4, 2, v0         ; row")
    e("  v_and_b32 v5, 3, v0")
    e("  v_bfe_u32 v6, v4, 1, 2")
    e("  v_xor_b32 v5, v5, v6            ; c")
    e("  s_mul_i32 s49, s30, 96")
    e("  s_add_u32 s49, s49, s48")
    e("  v_add_u32 v4, s49, v4")
    e("  v_mul_u32_u24 v4, 896, v4")
    e("  v_lshl_add_u32 v10, v5, 4, v4   ; vXoff")
    e("  s_lshl_b32 s48, s48, 6")
    e("  v_lshrrev_b32 v4, 5, v0         ; rr")
    e("  v_and_b32 v5, 31, v0")
    e("  s_lshl_b32 s50, s34, 2")
    for i in range(2):
        e(f"  v_add_u32 v6, s50, v4")
        if i: e(f"  v_add_u32 v6, 2, v6")
        e("  v_and_b32 v7, 3, v6")
        e("  v_bfe_u32 v8, v6, 3, 1")
        e("  v_lshl_or_b32 v7, v8, 2, v7")
        e("  v_lshlrev_b32 v7, 1, v7         ; swz")
        e("  v_xor_b32 v7, v5, v7            ; c")
        e("  v_lshlrev_b32 v7, 4, v7")
        e("  v_lshl_add_u32 v7, v6, 13, v7")
        e("  s_lshl_b32 s51, s32, 9")
        e(f"  v_add_u32 v{11+i}, s51, v7      ; vWoff{i}")
    e("  s_lshl_b32 s50, s34, 11")
    def issue_stage(s):
        b = s % 3
        base = SB + b * SBS
        e(f"  s_mov_b32 s52, {s*262144}")
        e(f"  s_add_u32 s53, s50, {base}")
        e("  s_mov_b32 m0, s53")
        e(f"  s_mov_b32 s54, {s*64}")
        e("  buffer_load_dwordx4 v11, s[12:15], s52 offen lds")
        e(f"  s_add_u32 s53, s50, {base+1024}")
        e("  s_mov_b32 m0, s53")
        e("  s_nop 0")
        e("  buffer_load_dwordx4 v12, s[12:15], s52 offen lds")
        e(f"  s_add_u32 s53, s48, {base+XS}")
        e("  s_mov_b32 m0, s53")
        e("  s_nop 0")
        e("  buffer_load_dwordx4 v10, s[8:11], s54 offen lds")
    issue_stage(0); issue_stage(1)
    e("  s_and_b32 s55, s34, 1           ; mi")
    e("  s_lshr_b32 s56, s34, 1          ; ni")
    e("  v_bfe_u32 v4, v2, 1, 2")
    e("  v_xor_b32 v4, v3, v4")
    e("  v_lshlrev_b32 v4, 4, v4")
    e("  v_lshl_add_u32 v4, v2, 6, v4")
    e("  s_mul_i32 s47, s55, 3072")
    for b in range(3):
        e(f"  s_add_u32 s53, s47, {SB + b*SBS + XS}")
        e(f"  v_add_u32 v{13+b}, s53, v4")
    e("  v_lshrrev_b32 v4, 2, v2         ; j/4")
    e("  v_lshl_add_u32 v4, v3, 3, v4    ; row(half0)")
    for half in range(2):
        if half: e("  v_add_u32 v4, 4, v4")
        e("  v_and_b32 v5, 3, v4")
        e("  v_bfe_u32 v6, v4, 3, 1")
        e("  v_lshl_or_b32 v5, v6, 2, v5")
        e("  v_lshlrev_b32 v5, 1, v5         ; swz")
        e("  v_bfe_u32 v6, v2, 1, 1          ; (j%4)/2")
        e("  s_lshl_b32 s47, s56, 3")
        e("  v_add_u32 v6, s47, v6")
        e("  v_xor_b32 v5, v5, v6")
        e("  v_lshlrev_b32 v5, 4, v5")
        e("  v_lshl_add_u32 v5, v4, 9, v5")
        e("  v_and_b32 v6, 1, v2")
        e("  v_lshl_add_u32 v5, v6, 3, v5")
        for b in range(3):
            for mt in range(4):
                r = 16 + b*8 + half*4 + mt
                e(f"  v_xor_b32 v6, {mt*32}, v5")
                e(f"  v_add_u32 v{r}, {SB + b*SBS}, v6")
    ACC = 64
    for r in range(48): e(f"  v_mov_b32 v{ACC+r}, 0")
    FA, FB = 40, 112
    for s in range(14):
        b = s % 3
        if s == 0: n = 3
        elif s == 1: n = 3
        else: n = 3 if s < 13 else 0
        e(f"  ; ---- stage {s}")
        e(f"  s_waitcnt vmcnt({n})")
        e("  s_barrier")
        if s + 2 < 14: issue_stage(s + 2)
        for nt in range(3):
            e(f"  ds_read_b128 v[{FB+4*nt}:{FB+4*nt+3}], v{13+b} offset:{nt*1024}")
        for mt in range(4):
            for half in range(2):
                e(f"  ds_read_b64_tr_b16 v[{FA+4*mt+2*half}:{FA+4*mt+2*half+1}], v{16+b*8+half*4+mt}")
        for mt in range(4):
            e(f"  s_waitcnt lgkmcnt({2*(3-mt)})")
            for nt in range(3):
                a = ACC + (mt*3+nt)*4
                e(f"  v_mfma_f32_16x16x32_bf16 v[{a}:{a+3}], v[{FA+4*mt}:{FA+4*mt+3}], v[{FB+4*nt}:{FB+4*nt+3}], v[{a}:{a+3}]")
    e("  s_barrier")
    e("  ; V loads")
    e("  v_lshrrev_b32 v4, 5, v0")
    e("  v_and_b32 v5, 31, v0")
    for j in range(6):
        e(f"  v_add_u32 v6, s35, v4")
        if j: e(f"  v_add_u32 v6, {2*j}, v6")
        e("  v_cmp_le_u32 vcc, 48, v6")
        e("  v_subrev_u32 v7, 48, v6")
        e("  s_nop 0")
        e("  v_cndmask_b32 v7, v6, v7, vcc")
        e("  v_mov_b32 v8, 0")
        e("  v_mov_b32 v9, 196608")
        e("  v_cndmask_b32 v8, v8, v9, vcc")
        e("  v_and_b32 v9, 7, v7")
        e("  v_lshlrev_b32 v9, 1, v9")
        e("  v_xor_b32 v9, v5, v9")
        e("  v_lshlrev_b32 v9, 4, v9")
        e("  v_lshl_add_u32 v9, v7, 9, v9")
        e("  v_add_u32 v9, v9, v8")
        e(f"  s_mul_i32 s47, s34, 6144")
        e(f"  s_add_u32 s47, s47, {VB + j*1024}")
        e("  s_mov_b32 m0, s47")
        e("  s_nop 0")
        e("  buffer_load_dwordx4 v9, s[20:23], s46 offen lds")
    e("  ; Q -> LDS")
    e("  v_lshrrev_b32 v4, 1, v3")
    e("  s_lshl_b32 s47, s56, 3")
    e("  v_add_u32 v4, s47, v4")
    e("  v_xor_b32 v4, v4, v2")
    e("  v_lshlrev_b32 v4, 4, v4")
    e("  v_lshl_add_u32 v4, v2, 9, v4")
    e("  v_and_b32 v5, 1, v3")
    e("  v_lshl_add_u32 v4, v5, 3, v4")
    e("  s_mul_i32 s47, s55, 24576")
    e(f"  s_add_u32 s47, s47, {QB}")
    e("  v_add_u32 v4, s47, v4")
    for mt in range(4):
        e(f"  v_xor_b32 v5, {mt*32}, v4")
        for nt in range(3):
            a = ACC + (mt*3+nt)*4
            e(f"  v_cvt_pk_bf16_f32 v6, v{a}, v{a+1}")
            e(f"  v_cvt_pk_bf16_f32 v7, v{a+2}, v{a+3}")
            e(f"  ds_write_b64 v5, v[6:7] offset:{nt*8192}")
    e("  s_waitcnt lgkmcnt(0)")
    e("  s_barrier")
    if len(sys.argv) > 2:
        e("  v_lshlrev_b32 v4, 4, v0")
        e("  s_lshl_b32 s47, s34, 10")
        e("  v_add_u32 v4, s47, v4")
        e(f"  v_add_u32 v5, {QB}, v4")
        e("  s_mul_i32 s53, s2, 49152")
        for j in range(6):
            e(f"  ds_read_b128 v[40:43], v5 offset:{j*8192}")
            e("  s_waitcnt lgkmcnt(0)")
            e(f"  buffer_store_dwordx4 v[40:43], v4, s[24:27], s53 offen")
            e("  s_add_u32 s53, s53, 8192")
        e("  s_branch K1_END")
    e("  s_cmp_ge_u32 s34, 6")
    e("  s_cbranch_scc1 K1_END")
    e("  s_cmp_ge_u32 s34, 3")
    e("  s_cselect_b32 s55, 1, 0         ; bb")
    e("  s_mul_i32 s47, s55, 3")
    e("  s_sub_u32 s56, s34, s47         ; qt")
    e("  v_xor_b32 v4, v3, v2")
    e("  v_lshlrev_b32 v4, 4, v4")
    e("  v_lshl_add_u32 v4, v2, 9, v4")
    e("  s_mul_i32 s47, s55, 24576")
    e(f"  s_add_u32 s53, s47, {KB}")
    e("  v_add_u32 v5, s53, v4           ; K base")
    e("  s_lshl_b32 s53, s56, 13")
    e("  s_add_u32 s53, s53, s47")
    e(f"  s_add_u32 s53, s53, {QB}")
    e("  v_add_u32 v6, s53, v4           ; Q base")
    SA = 64
    for r in range(12): e(f"  v_mov_b32 v{SA+r}, 0")
    for ks in range(8):
        e(f"  v_xor_b32 v7, {ks*64}, v5")
        e(f"  v_xor_b32 v8, {ks*64}, v6")
        e(f"  ds_read_b128 v[112:115], v8")
        for kt in range(3):
            e(f"  ds_read_b128 v[{40+4*kt}:{43+4*kt}], v7 offset:{kt*8192}")
        e("  s_waitcnt lgkmcnt(0)")
        for kt in range(3):
            a = SA + 4*kt
            e(f"  v_mfma_f32_16x16x32_bf16 v[{a}:{a+3}], v[{40+4*kt}:{43+4*kt}], v[112:115], v[{a}:{a+3}]")
    e("  s_nop 7")
    e("  s_nop 1")
    e("  v_max_f32 v9, v64, v65")
    for r in range(2, 12): e(f"  v_max_f32 v9, v9, v{SA+r}")
    e("  v_mov_b32 v10, v9")
    e("  s_nop 1")
    e("  v_permlane16_swap_b32 v9, v10")
    e("  v_max_f32 v9, v9, v10")
    e("  v_mov_b32 v10, v9")
    e("  s_nop 1")
    e("  v_permlane32_swap_b32 v9, v10")
    e("  v_max_f32 v9, v9, v10")
    e("  s_mov_b32 s47, 0x3db8aa3b       ; log2(e)/16")
    e("  v_mul_f32 v9, s47, v9")
    for r in range(12):
        e(f"  v_fma_f32 v{SA+r}, v{SA+r}, s47, -v9")
    for r in range(12):
        e(f"  v_exp_f32 v{SA+r}, v{SA+r}")
    e("  s_nop 0")
    e("  v_add_f32 v10, v64, v65")
    for r in range(2, 12): e(f"  v_add_f32 v10, v10, v{SA+r}")
    e("  v_mov_b32 v11, v10")
    e("  s_nop 1")
    e("  v_permlane16_swap_b32 v10, v11")
    e("  v_add_f32 v10, v10, v11")
    e("  v_mov_b32 v11, v10")
    e("  s_nop 1")
    e("  v_permlane32_swap_b32 v10, v11")
    e("  v_add_f32 v10, v10, v11")
    e("  v_rcp_f32 v10, v10")
    e("  s_nop 0")
    for r in range(12): e(f"  v_mul_f32 v{SA+r}, v{SA+r}, v10")
    for kt in range(3):
        e(f"  v_cvt_pk_bf16_f32 v{76+2*kt}, v{SA+4*kt}, v{SA+4*kt+1}")
        e(f"  v_cvt_pk_bf16_f32 v{77+2*kt}, v{SA+4*kt+2}, v{SA+4*kt+3}")
    e("  v_lshrrev_b32 v4, 2, v2")
    e("  v_lshl_add_u32 v4, v3, 2, v4    ; row 4g + j/4")
    e("  v_and_b32 v5, 7, v4")
    e("  v_lshlrev_b32 v5, 1, v5")
    e("  v_bfe_u32 v6, v2, 1, 1")
    e("  v_xor_b32 v5, v5, v6")
    e("  v_lshlrev_b32 v5, 4, v5")
    e("  v_lshl_add_u32 v5, v4, 9, v5")
    e("  v_and_b32 v6, 1, v2")
    e("  v_lshl_add_u32 v5, v6, 3, v5")
    e("  s_mul_i32 s47, s55, 24576")
    e(f"  s_add_u32 s47, s47, {VB}")
    e("  v_add_u32 v5, s47, v5           ; V base")
    e("  s_mul_i32 s47, s31, 48")
    e("  s_mul_i32 s53, s30, 6")
    e("  s_add_u32 s47, s47, s53")
    e("  s_add_u32 s47, s47, s34")
    e("  s_lshl_b32 s47, s47, 7")
    e("  s_lshl_b32 s53, s32, 3")
    e("  s_add_u32 s47, s47, s53")
    e("  s_lshl_b32 s47, s47, 10")
    e("  v_lshlrev_b32 v7, 4, v0")
    e("  s_waitcnt vmcnt(0)")
    e("  s_barrier")
    for dp in range(8):
        for h2 in range(2):
            dt = 2*dp + h2
            e(f"  v_xor_b32 v6, {dt*32}, v5")
            A = 84 + 8*h2
            e(f"  ds_read_b64_tr_b16 v[{A}:{A+1}], v6")
            e(f"  ds_read_b64_tr_b16 v[{A+2}:{A+3}], v6 offset:8192")
            e(f"  ds_read_b64_tr_b16 v[{A+4}:{A+5}], v6 offset:16384")
        e("  s_waitcnt lgkmcnt(0)")
        for h2 in range(2):
            A = 84 + 8*h2
            O = 100 + 4*h2
            e(f"  v_mfma_f32_16x16x32_bf16 v[{O}:{O+3}], v[{A}:{A+3}], v[76:79], 0")
            e("  s_nop 7")
            e(f"  v_mfma_f32_16x16x16_bf16 v[{O}:{O+3}], v[{A+4}:{A+5}], v[80:81], v[{O}:{O+3}]")
        e("  s_nop 7")
        e("  s_nop 1")
        e("  v_cvt_pk_bf16_f32 v108, v100, v101")
        e("  v_cvt_pk_bf16_f32 v109, v102, v103")
        e("  v_cvt_pk_bf16_f32 v110, v104, v105")
        e("  v_cvt_pk_bf16_f32 v111, v106, v107")
        e(f"  buffer_store_dwordx4 v[108:111], v7, s[24:27], s47 offen")
        e("  s_add_u32 s47, s47, 1024")
        e("  s_nop 0")
    e("K1_END:")
    e("  s_waitcnt vmcnt(0)")
    e("  s_endpgm")


def gen_k2():
    e(".p2align 8")
    e(".globl oproj_kernel")
    e(".type oproj_kernel,@function")
    e("oproj_kernel:")
    e("  s_cmp_ge_u32 s2, 224")
    e("  s_cbranch_scc1 K2_END")
    e("  s_and_b32 s28, s2, 7            ; x")
    e("  s_lshr_b32 s29, s2, 3           ; 0..27")
    e("  s_mov_b32 s30, 0")
    for t in range(1, 4):
        e(f"  s_cmp_ge_u32 s29, {7*t}")
        e(f"  s_cselect_b32 s30, {t}, s30    ; rg_local")
    e("  s_mul_i32 s31, s30, 7")
    e("  s_sub_u32 s31, s29, s31         ; cg")
    e("  s_lshr_b32 s32, s28, 2          ; side")
    e("  s_and_b32 s33, s28, 3")
    e("  s_lshl_b32 s33, s33, 2")
    e("  s_add_u32 s33, s33, s30         ; rg (0..15)")
    e("  s_mul_i32 s35, s32, 40")
    e("  s_load_dwordx2 s[36:37], s[0:1], s35 offset:32   ; wo")
    e("  s_load_dwordx2 s[38:39], s[0:1], %d" % KERNARG_OUT)
    e("  s_load_dwordx2 s[40:41], s[0:1], %d" % KERNARG_WS)
    e("  v_lshrrev_b32 v1, 6, v0")
    e("  v_and_b32 v0, 63, v0")
    e("  v_readfirstlane_b32 s34, v1")
    e("  s_waitcnt lgkmcnt(0)")
    for (d, src, n) in ((8, 36, 3670016), (12, 38, 1376256), (16, 40, 12582912)):
        e(f"  s_mov_b32 s{d}, s{src}")
        e(f"  s_mov_b32 s{d+1}, s{src+1}")
        e(f"  s_mov_b32 s{d+2}, {n}")
        e(f"  s_mov_b32 s{d+3}, 0x00020000")
    e("  v_and_b32 v2, 15, v0")
    e("  v_lshrrev_b32 v3, 4, v0")
    e("  v_lshrrev_b32 v4, 3, v0")
    e("  v_and_b32 v5, 7, v0")
    e("  v_bfe_u32 v6, v4, 1, 2")
    e("  v_lshlrev_b32 v6, 1, v6")
    e("  v_xor_b32 v5, v5, v6")
    e("  v_mul_u32_u24 v4, 896, v4")
    e("  v_lshl_add_u32 v4, v5, 4, v4")
    e("  s_lshl_b32 s42, s31, 7")
    e("  v_add_u32 v10, s42, v4")
    e("  s_mul_i32 s43, s34, %d          ; wave k base bytes" % (16*32*896))
    e("  s_lshl_b32 s44, s34, 14")
    e("  v_lshlrev_b32 v11, 4, v0")
    e("  s_mul_i32 s45, s32, 48")
    e("  s_mul_i32 s46, s33, 3")
    e("  s_add_u32 s45, s45, s46")
    e("  s_lshl_b32 s45, s45, 7")
    e("  s_lshl_b32 s46, s34, 4")
    e("  s_add_u32 s45, s45, s46")
    e("  s_lshl_b32 s45, s45, 10")
    e("  v_lshrrev_b32 v4, 2, v2")
    e("  v_lshl_add_u32 v4, v3, 2, v4")
    e("  v_bfe_u32 v5, v4, 1, 2")
    e("  v_lshlrev_b32 v5, 1, v5")
    e("  v_bfe_u32 v6, v2, 1, 1")
    e("  v_xor_b32 v5, v5, v6")
    e("  v_lshlrev_b32 v5, 4, v5")
    e("  v_lshl_add_u32 v5, v4, 7, v5")
    e("  v_and_b32 v6, 1, v2")
    e("  v_lshl_add_u32 v5, v6, 3, v5")
    e("  v_add_u32 v5, s44, v5")
    for nt in range(4): e(f"  v_xor_b32 v{12+nt}, {nt*32}, v5")
    ACC = 64
    for r in range(48): e(f"  v_mov_b32 v{ACC+r}, 0")
    AF = 112
    def issue(t):
        sl = t % 4
        e(f"  s_add_u32 s47, s43, {t*32*896}")
        for q in range(4):
            e(f"  s_add_u32 s48, s44, {sl*4096 + q*1024}")
            e("  s_mov_b32 m0, s48")
            e(f"  s_add_u32 s49, s47, {q*8*896}")
            e("  buffer_load_dwordx4 v10, s[8:11], s49 offen lds")
        e(f"  s_add_u32 s47, s45, {t*1024}")
        for mt in range(3):
            a = AF + sl*12 + mt*4
            if mt: e(f"  s_add_u32 s47, s47, {128*1024}")
            e(f"  buffer_load_dwordx4 v[{a}:{a+3}], v11, s[16:19], s47 offen")
    for t in range(3): issue(t)
    for t in range(16):
        sl = t % 4
        if t + 3 < 16: issue(t + 3)
        rem = min(16, t + 4) - (t + 1)
        e(f"  s_waitcnt vmcnt({7*rem})")
        for nt in range(4):
            e(f"  ds_read_b64_tr_b16 v[{40+4*nt}:{41+4*nt}], v{12+nt} offset:{sl*4096}")
            e(f"  ds_read_b64_tr_b16 v[{42+4*nt}:{43+4*nt}], v{12+nt} offset:{sl*4096+2048}")
        for nt in range(4):
            e(f"  s_waitcnt lgkmcnt({2*(3-nt)})")
            for mt in range(3):
                a = ACC + (mt*4+nt)*4
                A = AF + sl*12 + mt*4
                e(f"  v_mfma_f32_16x16x32_bf16 v[{a}:{a+3}], v[{A}:{A+3}], v[{40+4*nt}:{43+4*nt}], v[{a}:{a+3}]")
    e("  s_nop 7")
    e("  s_nop 1")
    e("  s_barrier")
    e("  s_mul_i32 s47, s34, 12288")
    e("  v_add_u32 v4, s47, v11")
    for tl in range(12):
        a = ACC + tl*4
        e(f"  ds_write_b128 v4, v[{a}:{a+3}] offset:{tl*1024}")
    e("  s_waitcnt lgkmcnt(0)")
    e("  s_barrier")
    e("  s_cmp_ge_u32 s34, 6")
    e("  s_cbranch_scc1 K2_END")
    e("  s_lshl_b32 s47, s34, 11")
    e("  v_add_u32 v4, s47, v11")
    e("  v_add_u32 v16, 49152, v4")
    e("  v_lshlrev_b32 v5, 2, v3")
    e("  s_mul_i32 s47, s33, 48")
    e("  v_add_u32 v5, s47, v5")
    e("  v_mul_u32_u24 v5, 1792, v5")
    e("  v_lshl_add_u32 v5, v2, 1, v5")
    e("  s_mul_i32 s47, s32, 896")
    e("  s_lshl_b32 s48, s31, 7")
    e("  s_add_u32 s47, s47, s48")
    e("  s_lshr_b32 s48, s34, 1          ; mt")
    e("  s_mul_i32 s48, s48, %d" % (16*1792))
    e("  s_add_u32 s47, s47, s48")
    e("  s_and_b32 s48, s34, 1")
    e("  s_lshl_b32 s48, s48, 6")
    e("  s_add_u32 s47, s47, s48")
    for r in range(4): e(f"  s_add_u32 s{50+r}, s47, {r*1792}")
    for u in range(2):
        for w in range(8):
            e(f"  ds_read_b128 v[{20+4*w}:{23+4*w}], v{4 if w<4 else 16} offset:{(w%4)*12288 + u*1024}")
        e("  s_waitcnt lgkmcnt(0)")
        for w in range(1, 8):
            for r in range(4): e(f"  v_add_f32 v{20+r}, v{20+r}, v{20+4*w+r}")
        e("  v_cvt_pk_bf16_f32 v6, v20, v21")
        e("  v_cvt_pk_bf16_f32 v7, v22, v23")
        e("  v_lshrrev_b32 v8, 16, v6")
        e("  v_lshrrev_b32 v9, 16, v7")
        for r, v in enumerate((6, 8, 7, 9)):
            e(f"  buffer_store_short v{v}, v5, s[12:15], s{50+r} offen offset:{u*32}")
    e("K2_END:")
    e("  s_endpgm")

def kd(name, vgpr):
    e(f".amdhsa_kernel {name}")
    e(f"  .amdhsa_next_free_vgpr {vgpr}")
    e("  .amdhsa_next_free_sgpr 102")
    e(f"  .amdhsa_accum_offset {vgpr}")
    e("  .amdhsa_group_segment_fixed_size 0")
    e("  .amdhsa_kernarg_size 104")
    e("  .amdhsa_user_sgpr_count 2")
    e("  .amdhsa_user_sgpr_kernarg_segment_ptr 1")
    e("  .amdhsa_system_sgpr_workgroup_id_x 1")
    e(".end_amdhsa_kernel")

hdr = open("concat_heads__gqa_block_cached__gqa_block_cached__near_ridge.s.ref").read().split("; Override launch")[0]
e(hdr.rstrip())
e("; @launch kernel=attn_kernel grid=(256,1,1) block=(512,1,1) lds=163840")
e("; @launch kernel=oproj_kernel grid=(224,1,1) block=(512,1,1) lds=131072")
e('.amdgcn_target "amdgcn-amd-amdhsa--gfx950"')
e(".text")
gen_k1()
gen_k2()
e('.section .rodata,"a"')
e(".p2align 6")
kd("attn_kernel", 128)
e(".p2align 6")
kd("oproj_kernel", 160)
open(sys.argv[1], "w").write("\n".join(L) + "\n")
```

```python
import sys
L = []
def e(s=""): L.append(s)

KERNARG_OUT, KERNARG_WS = 80, 96

def gen_k1():
    e(".p2align 8")
    e(".globl attn_kernel")
    e(".type attn_kernel,@function")
    e("attn_kernel:")
    e("  s_cmp_ge_u32 s2, 256")
    e("  s_cbranch_scc1 K1_END")
    e("  s_and_b32 s28, s2, 7            ; hk")
    e("  s_lshr_b32 s29, s2, 3")
    e("  s_and_b32 s29, s29, 1           ; hb")
    e("  s_lshr_b32 s30, s2, 4")
    e("  s_and_b32 s30, s30, 7           ; bp")
    e("  s_lshr_b32 s31, s2, 7           ; side")
    e("  s_lshl_b32 s32, s28, 1")
    e("  s_add_u32 s32, s32, s29         ; h")
    e("  s_mul_i32 s33, s31, 40")
    e("  s_load_dwordx8 s[36:43], s[0:1], s33")
    e("  s_load_dwordx2 s[44:45], s[0:1], %d" % KERNARG_WS)
    e("  v_lshrrev_b32 v1, 6, v0")
    e("  v_and_b32 v0, 63, v0            ; lane")
    e("  v_readfirstlane_b32 s34, v1")
    e("  s_waitcnt lgkmcnt(0)")
    for (d, src, n) in ((8, 36, 688128), (16, 38, 3145728), (20, 40, 3145728), (12, 42, 3670016), (24, 44, 12582912)):
        e(f"  s_mov_b32 s{d}, s{src}")
        e(f"  s_mov_b32 s{d+1}, s{src+1}")
        e(f"  s_mov_b32 s{d+2}, {n}")
        e(f"  s_mov_b32 s{d+3}, 0x00020000")
    e("  v_and_b32 v2, 15, v0            ; i = l%16")
    e("  v_lshrrev_b32 v3, 4, v0         ; g = l/16")
    KB, SB, SBS, QB, VB = 0, 49152, 22528, 114688, 49152
    XS = 16384
    e("  ; K prefetch")
    e("  v_lshrrev_b32 v4, 5, v0         ; rr")
    e("  v_and_b32 v5, 31, v0            ; p")
    e("  s_mul_i32 s35, s34, 12")
    e("  s_lshl_b32 s46, s30, 1          ; 2bp")
    e("  s_lshl_b32 s46, s46, 3")
    e("  s_add_u32 s46, s46, s28         ; (2bp*8+hk)")
    e("  s_mul_i32 s46, s46, 24576")
    for j in range(6):
        e(f"  v_add_u32 v6, s35, v4")
        if j: e(f"  v_add_u32 v6, {2*j}, v6       ; R")
        e("  v_cmp_le_u32 vcc, 48, v6")
        e("  v_subrev_u32 v7, 48, v6")
        e("  s_nop 0")
        e("  v_cndmask_b32 v7, v6, v7, vcc   ; key")
        e("  v_mov_b32 v8, 0")
        e("  v_mov_b32 v9, 196608")
        e("  v_cndmask_b32 v8, v8, v9, vcc")
        e("  v_and_b32 v9, 15, v7")
        e("  v_xor_b32 v9, v5, v9            ; c")
        e("  v_lshlrev_b32 v9, 4, v9")
        e("  v_lshl_add_u32 v9, v7, 9, v9")
        e("  v_add_u32 v9, v9, v8")
        e(f"  s_mul_i32 s47, s34, 6144")
        e(f"  s_add_u32 s47, s47, {KB + j*1024}")
        e("  s_mov_b32 m0, s47")
        e("  s_nop 0")
        e("  buffer_load_dwordx4 v9, s[16:19], s46 offen lds")
    e("  s_cmp_ge_u32 s34, 6")
    e("  s_cselect_b32 s47, 6, 0")
    e("  s_sub_u32 s47, s34, s47         ; w%6")
    e("  s_lshl_b32 s48, s47, 4          ; rowbase")
    e("  v_lshrrev_b32 v4, 2, v0         ; row")
    e("  v_and_b32 v5, 3, v0")
    e("  v_bfe_u32 v6, v4, 1, 2")
    e("  v_xor_b32 v5, v5, v6            ; c")
    e("  s_mul_i32 s49, s30, 96")
    e("  s_add_u32 s49, s49, s48")
    e("  v_add_u32 v4, s49, v4")
    e("  v_mul_u32_u24 v4, 896, v4")
    e("  v_lshl_add_u32 v10, v5, 4, v4   ; vXoff")
    e("  s_lshl_b32 s48, s48, 6")
    e("  v_lshrrev_b32 v4, 5, v0         ; rr")
    e("  v_and_b32 v5, 31, v0")
    e("  s_lshl_b32 s50, s34, 2")
    for i in range(2):
        e(f"  v_add_u32 v6, s50, v4")
        if i: e(f"  v_add_u32 v6, 2, v6")
        e("  v_and_b32 v7, 3, v6")
        e("  v_bfe_u32 v8, v6, 3, 1")
        e("  v_lshl_or_b32 v7, v8, 2, v7")
        e("  v_lshlrev_b32 v7, 1, v7         ; swz")
        e("  v_xor_b32 v7, v5, v7            ; c")
        e("  v_lshlrev_b32 v7, 4, v7")
        e("  v_lshl_add_u32 v7, v6, 13, v7")
        e("  s_lshl_b32 s51, s32, 9")
        e(f"  v_add_u32 v{11+i}, s51, v7      ; vWoff{i}")
    e("  s_lshl_b32 s50, s34, 11")
    def issue_stage(s):
        b = s % 4
        base = SB + b * SBS
        e(f"  s_mov_b32 s52, {s*262144}")
        e(f"  s_add_u32 s53, s50, {base}")
        e("  s_mov_b32 m0, s53")
        e(f"  s_mov_b32 s54, {s*64}")
        e("  buffer_load_dwordx4 v11, s[12:15], s52 offen lds")
        e(f"  s_add_u32 s53, s50, {base+1024}")
        e("  s_mov_b32 m0, s53")
        e("  s_nop 0")
        e("  buffer_load_dwordx4 v12, s[12:15], s52 offen lds")
        e(f"  s_add_u32 s53, s48, {base+XS}")
        e("  s_mov_b32 m0, s53")
        e("  s_nop 0")
        e("  buffer_load_dwordx4 v10, s[8:11], s54 offen lds")
    issue_stage(0); issue_stage(1); issue_stage(2)
    e("  s_and_b32 s55, s34, 1           ; mi")
    e("  s_lshr_b32 s56, s34, 1          ; ni")
    e("  v_bfe_u32 v4, v2, 1, 2")
    e("  v_xor_b32 v4, v3, v4")
    e("  v_lshlrev_b32 v4, 4, v4")
    e("  v_lshl_add_u32 v4, v2, 6, v4")
    e("  s_mul_i32 s47, s55, 3072")
    for b in range(4):
        e(f"  s_add_u32 s53, s47, {SB + b*SBS + XS}")
        e(f"  v_add_u32 v{56+b}, s53, v4")
    e("  v_lshrrev_b32 v4, 2, v2         ; j/4")
    e("  v_lshl_add_u32 v4, v3, 3, v4    ; row(half0)")
    for half in range(2):
        if half: e("  v_add_u32 v4, 4, v4")
        e("  v_and_b32 v5, 3, v4")
        e("  v_bfe_u32 v6, v4, 3, 1")
        e("  v_lshl_or_b32 v5, v6, 2, v5")
        e("  v_lshlrev_b32 v5, 1, v5         ; swz")
        e("  v_bfe_u32 v6, v2, 1, 1          ; (j%4)/2")
        e("  s_lshl_b32 s47, s56, 3")
        e("  v_add_u32 v6, s47, v6")
        e("  v_xor_b32 v5, v5, v6")
        e("  v_lshlrev_b32 v5, 4, v5")
        e("  v_lshl_add_u32 v5, v4, 9, v5")
        e("  v_and_b32 v6, 1, v2")
        e("  v_lshl_add_u32 v5, v6, 3, v5")
        for b in range(4):
            for mt in range(4):
                r = 16 + b*8 + half*4 + mt
                e(f"  v_xor_b32 v6, {mt*32}, v5")
                e(f"  v_add_u32 v{r}, {SB + b*SBS}, v6")
    ACC = 64
    for r in range(48): e(f"  v_mov_b32 v{ACC+r}, 0")
    FA, FB = 124, 112
    for s in range(14):
        b = s % 4
        n = 3*min(2, 13-s)
        e(f"  ; ---- stage {s}")
        e(f"  s_waitcnt vmcnt({n})")
        e("  s_barrier")
        if s + 3 < 14: issue_stage(s + 3)
        for nt in range(3):
            e(f"  ds_read_b128 v[{FB+4*nt}:{FB+4*nt+3}], v{56+b} offset:{nt*1024}")
        for mt in range(4):
            for half in range(2):
                e(f"  ds_read_b64_tr_b16 v[{FA+4*mt+2*half}:{FA+4*mt+2*half+1}], v{16+b*8+half*4+mt}")
        for mt in range(4):
            e(f"  s_waitcnt lgkmcnt({2*(3-mt)})")
            for nt in range(3):
                a = ACC + (mt*3+nt)*4
                e(f"  v_mfma_f32_16x16x32_bf16 v[{a}:{a+3}], v[{FA+4*mt}:{FA+4*mt+3}], v[{FB+4*nt}:{FB+4*nt+3}], v[{a}:{a+3}]")
    e("  s_barrier")
    e("  ; V loads")
    e("  v_lshrrev_b32 v4, 5, v0")
    e("  v_and_b32 v5, 31, v0")
    for j in range(6):
        e(f"  v_add_u32 v6, s35, v4")
        if j: e(f"  v_add_u32 v6, {2*j}, v6")
        e("  v_cmp_le_u32 vcc, 48, v6")
        e("  v_subrev_u32 v7, 48, v6")
        e("  s_nop 0")
        e("  v_cndmask_b32 v7, v6, v7, vcc")
        e("  v_mov_b32 v8, 0")
        e("  v_mov_b32 v9, 196608")
        e("  v_cndmask_b32 v8, v8, v9, vcc")
        e("  v_and_b32 v9, 7, v7")
        e("  v_lshlrev_b32 v9, 1, v9")
        e("  v_xor_b32 v9, v5, v9")
        e("  v_lshlrev_b32 v9, 4, v9")
        e("  v_lshl_add_u32 v9, v7, 9, v9")
        e("  v_add_u32 v9, v9, v8")
        e(f"  s_mul_i32 s47, s34, 6144")
        e(f"  s_add_u32 s47, s47, {VB + j*1024}")
        e("  s_mov_b32 m0, s47")
        e("  s_nop 0")
        e("  buffer_load_dwordx4 v9, s[20:23], s46 offen lds")
    e("  ; Q -> LDS")
    e("  v_lshrrev_b32 v4, 1, v3")
    e("  s_lshl_b32 s47, s56, 3")
    e("  v_add_u32 v4, s47, v4")
    e("  v_xor_b32 v4, v4, v2")
    e("  v_lshlrev_b32 v4, 4, v4")
    e("  v_lshl_add_u32 v4, v2, 9, v4")
    e("  v_and_b32 v5, 1, v3")
    e("  v_lshl_add_u32 v4, v5, 3, v4")
    e("  s_mul_i32 s47, s55, 24576")
    e(f"  s_add_u32 s47, s47, {QB}")
    e("  v_add_u32 v4, s47, v4")
    for mt in range(4):
        e(f"  v_xor_b32 v5, {mt*32}, v4")
        for nt in range(3):
            a = ACC + (mt*3+nt)*4
            e(f"  v_cvt_pk_bf16_f32 v6, v{a}, v{a+1}")
            e(f"  v_cvt_pk_bf16_f32 v7, v{a+2}, v{a+3}")
            e(f"  ds_write_b64 v5, v[6:7] offset:{nt*8192}")
    e("  s_waitcnt lgkmcnt(0)")
    e("  s_barrier")
    if len(sys.argv) > 2:
        e("  v_lshlrev_b32 v4, 4, v0")
        e("  s_lshl_b32 s47, s34, 10")
        e("  v_add_u32 v4, s47, v4")
        e(f"  v_add_u32 v5, {QB}, v4")
        e("  s_mul_i32 s53, s2, 49152")
        for j in range(6):
            e(f"  ds_read_b128 v[40:43], v5 offset:{j*8192}")
            e("  s_waitcnt lgkmcnt(0)")
            e(f"  buffer_store_dwordx4 v[40:43], v4, s[24:27], s53 offen")
            e("  s_add_u32 s53, s53, 8192")
        e("  s_branch K1_END")
    e("  s_cmp_ge_u32 s34, 6")
    e("  s_cbranch_scc1 K1_END")
    e("  s_cmp_ge_u32 s34, 3")
    e("  s_cselect_b32 s55, 1, 0         ; bb")
    e("  s_mul_i32 s47, s55, 3")
    e("  s_sub_u32 s56, s34, s47         ; qt")
    e("  v_xor_b32 v4, v3, v2")
    e("  v_lshlrev_b32 v4, 4, v4")
    e("  v_lshl_add_u32 v4, v2, 9, v4")
    e("  s_mul_i32 s47, s55, 24576")
    e(f"  s_add_u32 s53, s47, {KB}")
    e("  v_add_u32 v5, s53, v4           ; K base")
    e("  s_lshl_b32 s53, s56, 13")
    e("  s_add_u32 s53, s53, s47")
    e(f"  s_add_u32 s53, s53, {QB}")
    e("  v_add_u32 v6, s53, v4           ; Q base")
    SA = 64
    for r in range(12): e(f"  v_mov_b32 v{SA+r}, 0")
    for ks in range(8):
        e(f"  v_xor_b32 v7, {ks*64}, v5")
        e(f"  v_xor_b32 v8, {ks*64}, v6")
        e(f"  ds_read_b128 v[112:115], v8")
        for kt in range(3):
            e(f"  ds_read_b128 v[{40+4*kt}:{43+4*kt}], v7 offset:{kt*8192}")
        e("  s_waitcnt lgkmcnt(0)")
        for kt in range(3):
            a = SA + 4*kt
            e(f"  v_mfma_f32_16x16x32_bf16 v[{a}:{a+3}], v[{40+4*kt}:{43+4*kt}], v[112:115], v[{a}:{a+3}]")
    e("  s_nop 7")
    e("  s_nop 1")
    e("  v_max_f32 v9, v64, v65")
    for r in range(2, 12): e(f"  v_max_f32 v9, v9, v{SA+r}")
    e("  v_mov_b32 v10, v9")
    e("  s_nop 1")
    e("  v_permlane16_swap_b32 v9, v10")
    e("  v_max_f32 v9, v9, v10")
    e("  v_mov_b32 v10, v9")
    e("  s_nop 1")
    e("  v_permlane32_swap_b32 v9, v10")
    e("  v_max_f32 v9, v9, v10")
    e("  s_mov_b32 s47, 0x3db8aa3b       ; log2(e)/16")
    e("  v_mul_f32 v9, s47, v9")
    for r in range(12):
        e(f"  v_fma_f32 v{SA+r}, v{SA+r}, s47, -v9")
    for r in range(12):
        e(f"  v_exp_f32 v{SA+r}, v{SA+r}")
    e("  s_nop 0")
    e("  v_add_f32 v10, v64, v65")
    for r in range(2, 12): e(f"  v_add_f32 v10, v10, v{SA+r}")
    e("  v_mov_b32 v11, v10")
    e("  s_nop 1")
    e("  v_permlane16_swap_b32 v10, v11")
    e("  v_add_f32 v10, v10, v11")
    e("  v_mov_b32 v11, v10")
    e("  s_nop 1")
    e("  v_permlane32_swap_b32 v10, v11")
    e("  v_add_f32 v10, v10, v11")
    e("  v_rcp_f32 v10, v10")
    e("  s_nop 0")
    for r in range(12): e(f"  v_mul_f32 v{SA+r}, v{SA+r}, v10")
    for kt in range(3):
        e(f"  v_cvt_pk_bf16_f32 v{76+2*kt}, v{SA+4*kt}, v{SA+4*kt+1}")
        e(f"  v_cvt_pk_bf16_f32 v{77+2*kt}, v{SA+4*kt+2}, v{SA+4*kt+3}")
    e("  v_lshrrev_b32 v4, 2, v2")
    e("  v_lshl_add_u32 v4, v3, 2, v4    ; row 4g + j/4")
    e("  v_and_b32 v5, 7, v4")
    e("  v_lshlrev_b32 v5, 1, v5")
    e("  v_bfe_u32 v6, v2, 1, 1")
    e("  v_xor_b32 v5, v5, v6")
    e("  v_lshlrev_b32 v5, 4, v5")
    e("  v_lshl_add_u32 v5, v4, 9, v5")
    e("  v_and_b32 v6, 1, v2")
    e("  v_lshl_add_u32 v5, v6, 3, v5")
    e("  s_mul_i32 s47, s55, 24576")
    e(f"  s_add_u32 s47, s47, {VB}")
    e("  v_add_u32 v5, s47, v5           ; V base")
    e("  s_mul_i32 s47, s31, 48")
    e("  s_mul_i32 s53, s30, 6")
    e("  s_add_u32 s47, s47, s53")
    e("  s_add_u32 s47, s47, s34")
    e("  s_lshl_b32 s47, s47, 7")
    e("  s_lshl_b32 s53, s32, 3")
    e("  s_add_u32 s47, s47, s53")
    e("  s_lshl_b32 s47, s47, 10")
    e("  v_lshlrev_b32 v7, 4, v0")
    e("  s_waitcnt vmcnt(0)")
    e("  s_barrier")
    for dp in range(8):
        for h2 in range(2):
            dt = 2*dp + h2
            e(f"  v_xor_b32 v6, {dt*32}, v5")
            A = 84 + 8*h2
            e(f"  ds_read_b64_tr_b16 v[{A}:{A+1}], v6")
            e(f"  ds_read_b64_tr_b16 v[{A+2}:{A+3}], v6 offset:8192")
            e(f"  ds_read_b64_tr_b16 v[{A+4}:{A+5}], v6 offset:16384")
        e("  s_waitcnt lgkmcnt(0)")
        for h2 in range(2):
            A = 84 + 8*h2
            O = 100 + 4*h2
            e(f"  v_mfma_f32_16x16x32_bf16 v[{O}:{O+3}], v[{A}:{A+3}], v[76:79], 0")
            e("  s_nop 7")
            e(f"  v_mfma_f32_16x16x16_bf16 v[{O}:{O+3}], v[{A+4}:{A+5}], v[80:81], v[{O}:{O+3}]")
        e("  s_nop 7")
        e("  s_nop 1")
        e("  v_cvt_pk_bf16_f32 v108, v100, v101")
        e("  v_cvt_pk_bf16_f32 v109, v102, v103")
        e("  v_cvt_pk_bf16_f32 v110, v104, v105")
        e("  v_cvt_pk_bf16_f32 v111, v106, v107")
        e(f"  buffer_store_dwordx4 v[108:111], v7, s[24:27], s47 offen")
        e("  s_add_u32 s47, s47, 1024")
        e("  s_nop 0")
    e("K1_END:")
    e("  s_waitcnt vmcnt(0)")
    e("  s_endpgm")


def gen_k2():
    e(".p2align 8")
    e(".globl oproj_kernel")
    e(".type oproj_kernel,@function")
    e("oproj_kernel:")
    e("  s_cmp_ge_u32 s2, 224")
    e("  s_cbranch_scc1 K2_END")
    e("  s_and_b32 s28, s2, 7            ; x")
    e("  s_lshr_b32 s29, s2, 3           ; 0..27")
    e("  s_mov_b32 s30, 0")
    for t in range(1, 4):
        e(f"  s_cmp_ge_u32 s29, {7*t}")
        e(f"  s_cselect_b32 s30, {t}, s30    ; rg_local")
    e("  s_mul_i32 s31, s30, 7")
    e("  s_sub_u32 s31, s29, s31         ; cg")
    e("  s_lshr_b32 s32, s28, 2          ; side")
    e("  s_and_b32 s33, s28, 3")
    e("  s_lshl_b32 s33, s33, 2")
    e("  s_add_u32 s33, s33, s30         ; rg (0..15)")
    e("  s_mul_i32 s35, s32, 40")
    e("  s_load_dwordx2 s[36:37], s[0:1], s35 offset:32   ; wo")
    e("  s_load_dwordx2 s[38:39], s[0:1], %d" % KERNARG_OUT)
    e("  s_load_dwordx2 s[40:41], s[0:1], %d" % KERNARG_WS)
    e("  v_lshrrev_b32 v1, 6, v0")
    e("  v_and_b32 v0, 63, v0")
    e("  v_readfirstlane_b32 s34, v1")
    e("  s_waitcnt lgkmcnt(0)")
    for (d, src, n) in ((8, 36, 3670016), (12, 38, 1376256), (16, 40, 12582912)):
        e(f"  s_mov_b32 s{d}, s{src}")
        e(f"  s_mov_b32 s{d+1}, s{src+1}")
        e(f"  s_mov_b32 s{d+2}, {n}")
        e(f"  s_mov_b32 s{d+3}, 0x00020000")
    e("  v_and_b32 v2, 15, v0")
    e("  v_lshrrev_b32 v3, 4, v0")
    e("  v_lshrrev_b32 v4, 3, v0")
    e("  v_and_b32 v5, 7, v0")
    e("  v_bfe_u32 v6, v4, 1, 2")
    e("  v_lshlrev_b32 v6, 1, v6")
    e("  v_xor_b32 v5, v5, v6")
    e("  v_mul_u32_u24 v4, 896, v4")
    e("  v_lshl_add_u32 v4, v5, 4, v4")
    e("  s_lshl_b32 s42, s31, 7")
    e("  v_add_u32 v10, s42, v4")
    e("  s_mul_i32 s43, s34, %d          ; wave k base bytes" % (16*32*896))
    e("  s_lshl_b32 s44, s34, 14")
    e("  v_lshlrev_b32 v11, 4, v0")
    e("  s_mul_i32 s45, s32, 48")
    e("  s_mul_i32 s46, s33, 3")
    e("  s_add_u32 s45, s45, s46")
    e("  s_lshl_b32 s45, s45, 7")
    e("  s_lshl_b32 s46, s34, 4")
    e("  s_add_u32 s45, s45, s46")
    e("  s_lshl_b32 s45, s45, 10")
    e("  v_lshrrev_b32 v4, 2, v2")
    e("  v_lshl_add_u32 v4, v3, 2, v4")
    e("  v_bfe_u32 v5, v4, 1, 2")
    e("  v_lshlrev_b32 v5, 1, v5")
    e("  v_bfe_u32 v6, v2, 1, 1")
    e("  v_xor_b32 v5, v5, v6")
    e("  v_lshlrev_b32 v5, 4, v5")
    e("  v_lshl_add_u32 v5, v4, 7, v5")
    e("  v_and_b32 v6, 1, v2")
    e("  v_lshl_add_u32 v5, v6, 3, v5")
    e("  v_add_u32 v5, s44, v5")
    for nt in range(4): e(f"  v_xor_b32 v{12+nt}, {nt*32}, v5")
    ACC = 64
    for r in range(48): e(f"  v_mov_b32 v{ACC+r}, 0")
    AF = 112
    def issue(t):
        sl = t % 4
        e(f"  s_add_u32 s47, s43, {t*32*896}")
        for q in range(4):
            e(f"  s_add_u32 s48, s44, {sl*4096 + q*1024}")
            e("  s_mov_b32 m0, s48")
            e(f"  s_add_u32 s49, s47, {q*8*896}")
            e("  buffer_load_dwordx4 v10, s[8:11], s49 offen lds")
        e(f"  s_add_u32 s47, s45, {t*1024}")
        for mt in range(3):
            a = AF + sl*12 + mt*4
            if mt: e(f"  s_add_u32 s47, s47, {128*1024}")
            e(f"  buffer_load_dwordx4 v[{a}:{a+3}], v11, s[16:19], s47 offen")
    for t in range(3): issue(t)
    for t in range(16):
        sl = t % 4
        if t + 3 < 16: issue(t + 3)
        rem = min(16, t + 4) - (t + 1)
        e(f"  s_waitcnt vmcnt({7*rem})")
        for nt in range(4):
            e(f"  ds_read_b64_tr_b16 v[{40+4*nt}:{41+4*nt}], v{12+nt} offset:{sl*4096}")
            e(f"  ds_read_b64_tr_b16 v[{42+4*nt}:{43+4*nt}], v{12+nt} offset:{sl*4096+2048}")
        for nt in range(4):
            e(f"  s_waitcnt lgkmcnt({2*(3-nt)})")
            for mt in range(3):
                a = ACC + (mt*4+nt)*4
                A = AF + sl*12 + mt*4
                e(f"  v_mfma_f32_16x16x32_bf16 v[{a}:{a+3}], v[{A}:{A+3}], v[{40+4*nt}:{43+4*nt}], v[{a}:{a+3}]")
    e("  s_nop 7")
    e("  s_nop 1")
    e("  s_barrier")
    e("  s_mul_i32 s47, s34, 12288")
    e("  v_add_u32 v4, s47, v11")
    for tl in range(12):
        a = ACC + tl*4
        e(f"  ds_write_b128 v4, v[{a}:{a+3}] offset:{tl*1024}")
    e("  s_waitcnt lgkmcnt(0)")
    e("  s_barrier")
    e("  s_cmp_ge_u32 s34, 6")
    e("  s_cbranch_scc1 K2_END")
    e("  s_lshl_b32 s47, s34, 11")
    e("  v_add_u32 v4, s47, v11")
    e("  v_add_u32 v16, 49152, v4")
    e("  v_lshlrev_b32 v5, 2, v3")
    e("  s_mul_i32 s47, s33, 48")
    e("  v_add_u32 v5, s47, v5")
    e("  v_mul_u32_u24 v5, 1792, v5")
    e("  v_lshl_add_u32 v5, v2, 1, v5")
    e("  s_mul_i32 s47, s32, 896")
    e("  s_lshl_b32 s48, s31, 7")
    e("  s_add_u32 s47, s47, s48")
    e("  s_lshr_b32 s48, s34, 1          ; mt")
    e("  s_mul_i32 s48, s48, %d" % (16*1792))
    e("  s_add_u32 s47, s47, s48")
    e("  s_and_b32 s48, s34, 1")
    e("  s_lshl_b32 s48, s48, 6")
    e("  s_add_u32 s47, s47, s48")
    for r in range(4): e(f"  s_add_u32 s{50+r}, s47, {r*1792}")
    for u in range(2):
        for w in range(8):
            e(f"  ds_read_b128 v[{20+4*w}:{23+4*w}], v{4 if w<4 else 16} offset:{(w%4)*12288 + u*1024}")
        e("  s_waitcnt lgkmcnt(0)")
        for w in range(1, 8):
            for r in range(4): e(f"  v_add_f32 v{20+r}, v{20+r}, v{20+4*w+r}")
        e("  v_cvt_pk_bf16_f32 v6, v20, v21")
        e("  v_cvt_pk_bf16_f32 v7, v22, v23")
        e("  v_lshrrev_b32 v8, 16, v6")
        e("  v_lshrrev_b32 v9, 16, v7")
        for r, v in enumerate((6, 8, 7, 9)):
            e(f"  buffer_store_short v{v}, v5, s[12:15], s{50+r} offen offset:{u*32}")
    e("K2_END:")
    e("  s_endpgm")

def kd(name, vgpr):
    e(f".amdhsa_kernel {name}")
    e(f"  .amdhsa_next_free_vgpr {vgpr}")
    e("  .amdhsa_next_free_sgpr 102")
    e(f"  .amdhsa_accum_offset {vgpr}")
    e("  .amdhsa_group_segment_fixed_size 0")
    e("  .amdhsa_kernarg_size 104")
    e("  .amdhsa_user_sgpr_count 2")
    e("  .amdhsa_user_sgpr_kernarg_segment_ptr 1")
    e("  .amdhsa_system_sgpr_workgroup_id_x 1")
    e(".end_amdhsa_kernel")

hdr = open("concat_heads__gqa_block_cached__gqa_block_cached__near_ridge.s.ref").read().split("; Override launch")[0]
e(hdr.rstrip())
e("; @launch kernel=attn_kernel grid=(256,1,1) block=(512,1,1) lds=163840")
e("; @launch kernel=oproj_kernel grid=(224,1,1) block=(512,1,1) lds=131072")
e('.amdgcn_target "amdgcn-amd-amdhsa--gfx950"')
e(".text")
gen_k1()
gen_k2()
e('.section .rodata,"a"')
e(".p2align 6")
kd("attn_kernel", 160)
e(".p2align 6")
kd("oproj_kernel", 160)
open(sys.argv[1], "w").write("\n".join(L) + "\n")
```

```python
import sys
L = []
def e(s=""): L.append(s)

KERNARG_OUT, KERNARG_WS = 80, 96

def gen_k1():
    e(".p2align 8")
    e(".globl attn_kernel")
    e(".type attn_kernel,@function")
    e("attn_kernel:")
    e("  s_cmp_ge_u32 s2, 256")
    e("  s_cbranch_scc1 K1_END")
    e("  s_and_b32 s28, s2, 7            ; hk")
    e("  s_lshr_b32 s29, s2, 3")
    e("  s_and_b32 s29, s29, 1           ; hb")
    e("  s_lshr_b32 s30, s2, 4")
    e("  s_and_b32 s30, s30, 7           ; bp")
    e("  s_lshr_b32 s31, s2, 7           ; side")
    e("  s_lshl_b32 s32, s28, 1")
    e("  s_add_u32 s32, s32, s29         ; h")
    e("  s_mul_i32 s33, s31, 40")
    e("  s_load_dwordx8 s[36:43], s[0:1], s33")
    e("  s_load_dwordx2 s[44:45], s[0:1], %d" % KERNARG_WS)
    e("  s_lshr_b32 s57, s28, 2")
    e("  s_mul_i32 s57, s57, 40")
    e("  s_load_dwordx2 s[58:59], s[0:1], s57 offset:32")
    e("  v_mov_b32 v140, v0")
    e("  v_lshrrev_b32 v1, 6, v0")
    e("  v_and_b32 v0, 63, v0            ; lane")
    e("  v_readfirstlane_b32 s34, v1")
    e("  s_waitcnt lgkmcnt(0)")
    for (d, src, n) in ((8, 36, 688128), (16, 38, 3145728), (20, 40, 3145728), (12, 42, 3670016), (24, 44, 12582912), (60, 58, 3670016)):
        e(f"  s_mov_b32 s{d}, s{src}")
        e(f"  s_mov_b32 s{d+1}, s{src+1}")
        e(f"  s_mov_b32 s{d+2}, {n}")
        e(f"  s_mov_b32 s{d+3}, 0x00020000")
    e("  v_and_b32 v2, 15, v0            ; i = l%16")
    e("  v_lshrrev_b32 v3, 4, v0         ; g = l/16")
    KB, SB, SBS, QB, VB = 0, 49152, 22528, 114688, 49152
    XS = 16384
    e("  ; K prefetch")
    e("  v_lshrrev_b32 v4, 5, v0         ; rr")
    e("  v_and_b32 v5, 31, v0            ; p")
    e("  s_mul_i32 s35, s34, 12")
    e("  s_lshl_b32 s46, s30, 1          ; 2bp")
    e("  s_lshl_b32 s46, s46, 3")
    e("  s_add_u32 s46, s46, s28         ; (2bp*8+hk)")
    e("  s_mul_i32 s46, s46, 24576")
    for j in range(6):
        e(f"  v_add_u32 v6, s35, v4")
        if j: e(f"  v_add_u32 v6, {2*j}, v6       ; R")
        e("  v_cmp_le_u32 vcc, 48, v6")
        e("  v_subrev_u32 v7, 48, v6")
        e("  s_nop 0")
        e("  v_cndmask_b32 v7, v6, v7, vcc   ; key")
        e("  v_mov_b32 v8, 0")
        e("  v_mov_b32 v9, 196608")
        e("  v_cndmask_b32 v8, v8, v9, vcc")
        e("  v_and_b32 v9, 15, v7")
        e("  v_xor_b32 v9, v5, v9            ; c")
        e("  v_lshlrev_b32 v9, 4, v9")
        e("  v_lshl_add_u32 v9, v7, 9, v9")
        e("  v_add_u32 v9, v9, v8")
        e(f"  s_mul_i32 s47, s34, 6144")
        e(f"  s_add_u32 s47, s47, {KB + j*1024}")
        e("  s_mov_b32 m0, s47")
        e("  s_nop 0")
        e("  buffer_load_dwordx4 v9, s[16:19], s46 offen lds")
    e("  s_cmp_ge_u32 s34, 6")
    e("  s_cselect_b32 s47, 6, 0")
    e("  s_sub_u32 s47, s34, s47         ; w%6")
    e("  s_lshl_b32 s48, s47, 4          ; rowbase")
    e("  v_lshrrev_b32 v4, 2, v0         ; row")
    e("  v_and_b32 v5, 3, v0")
    e("  v_bfe_u32 v6, v4, 1, 2")
    e("  v_xor_b32 v5, v5, v6            ; c")
    e("  s_mul_i32 s49, s30, 96")
    e("  s_add_u32 s49, s49, s48")
    e("  v_add_u32 v4, s49, v4")
    e("  v_mul_u32_u24 v4, 896, v4")
    e("  v_lshl_add_u32 v10, v5, 4, v4   ; vXoff")
    e("  s_lshl_b32 s48, s48, 6")
    e("  v_lshrrev_b32 v4, 5, v0         ; rr")
    e("  v_and_b32 v5, 31, v0")
    e("  s_lshl_b32 s50, s34, 2")
    for i in range(2):
        e(f"  v_add_u32 v6, s50, v4")
        if i: e(f"  v_add_u32 v6, 2, v6")
        e("  v_and_b32 v7, 3, v6")
        e("  v_bfe_u32 v8, v6, 3, 1")
        e("  v_lshl_or_b32 v7, v8, 2, v7")
        e("  v_lshlrev_b32 v7, 1, v7         ; swz")
        e("  v_xor_b32 v7, v5, v7            ; c")
        e("  v_lshlrev_b32 v7, 4, v7")
        e("  v_lshl_add_u32 v7, v6, 13, v7")
        e("  s_lshl_b32 s51, s32, 9")
        e(f"  v_add_u32 v{11+i}, s51, v7      ; vWoff{i}")
    e("  s_lshl_b32 s50, s34, 11")
    def issue_stage(s):
        b = s % 4
        base = SB + b * SBS
        e(f"  s_mov_b32 s52, {s*262144}")
        e(f"  s_add_u32 s53, s50, {base}")
        e("  s_mov_b32 m0, s53")
        e(f"  s_mov_b32 s54, {s*64}")
        e("  buffer_load_dwordx4 v11, s[12:15], s52 offen lds")
        e(f"  s_add_u32 s53, s50, {base+1024}")
        e("  s_mov_b32 m0, s53")
        e("  s_nop 0")
        e("  buffer_load_dwordx4 v12, s[12:15], s52 offen lds")
        e(f"  s_add_u32 s53, s48, {base+XS}")
        e("  s_mov_b32 m0, s53")
        e("  s_nop 0")
        e("  buffer_load_dwordx4 v10, s[8:11], s54 offen lds")
    issue_stage(0); issue_stage(1); issue_stage(2)
    e("  v_lshrrev_b32 v4, 5, v140")
    e("  v_and_b32 v5, 31, v140")
    e("  v_lshlrev_b32 v5, 4, v5")
    e("  v_lshl_add_u32 v5, v4, 13, v5")
    e("  s_mul_i32 s47, s30, %d" % (56*8192))
    e("  s_lshl_b32 s53, s32, 9")
    e("  s_add_u32 s47, s47, s53")
    for j in range(4):
        e("  buffer_load_dwordx4 v[144:147], v5, s[12:15], s47 offen")
        e("  s_add_u32 s47, s47, %d" % (16*8192))
    e("  v_lshlrev_b32 v5, 4, v140")
    for j in range(6):
        e(f"  s_add_u32 s47, s46, {(j//3)*196608 + (j%3)*8192}")
        e("  buffer_load_dwordx4 v[144:147], v5, s[20:23], s47 offen")
    e("  s_and_b32 s55, s34, 1           ; mi")
    e("  s_lshr_b32 s56, s34, 1          ; ni")
    e("  v_bfe_u32 v4, v2, 1, 2")
    e("  v_xor_b32 v4, v3, v4")
    e("  v_lshlrev_b32 v4, 4, v4")
    e("  v_lshl_add_u32 v4, v2, 6, v4")
    e("  s_mul_i32 s47, s55, 3072")
    for b in range(4):
        e(f"  s_add_u32 s53, s47, {SB + b*SBS + XS}")
        e(f"  v_add_u32 v{56+b}, s53, v4")
    e("  v_lshrrev_b32 v4, 2, v2         ; j/4")
    e("  v_lshl_add_u32 v4, v3, 3, v4    ; row(half0)")
    for half in range(2):
        if half: e("  v_add_u32 v4, 4, v4")
        e("  v_and_b32 v5, 3, v4")
        e("  v_bfe_u32 v6, v4, 3, 1")
        e("  v_lshl_or_b32 v5, v6, 2, v5")
        e("  v_lshlrev_b32 v5, 1, v5         ; swz")
        e("  v_bfe_u32 v6, v2, 1, 1          ; (j%4)/2")
        e("  s_lshl_b32 s47, s56, 3")
        e("  v_add_u32 v6, s47, v6")
        e("  v_xor_b32 v5, v5, v6")
        e("  v_lshlrev_b32 v5, 4, v5")
        e("  v_lshl_add_u32 v5, v4, 9, v5")
        e("  v_and_b32 v6, 1, v2")
        e("  v_lshl_add_u32 v5, v6, 3, v5")
        for b in range(4):
            for mt in range(4):
                r = 16 + b*8 + half*4 + mt
                e(f"  v_xor_b32 v6, {mt*32}, v5")
                e(f"  v_add_u32 v{r}, {SB + b*SBS}, v6")
    ACC = 64
    for r in range(48): e(f"  v_mov_b32 v{ACC+r}, 0")
    FA, FB = 124, 112
    for s in range(14):
        b = s % 4
        n = 3*min(2, 13-s) + (10 if s < 3 else 0)
        e(f"  ; ---- stage {s}")
        e(f"  s_waitcnt vmcnt({n})")
        e("  s_barrier")
        if s + 3 < 14: issue_stage(s + 3)
        for nt in range(3):
            e(f"  ds_read_b128 v[{FB+4*nt}:{FB+4*nt+3}], v{56+b} offset:{nt*1024}")
        for mt in range(4):
            for half in range(2):
                e(f"  ds_read_b64_tr_b16 v[{FA+4*mt+2*half}:{FA+4*mt+2*half+1}], v{16+b*8+half*4+mt}")
        for mt in range(4):
            e(f"  s_waitcnt lgkmcnt({2*(3-mt)})")
            for nt in range(3):
                a = ACC + (mt*3+nt)*4
                e(f"  v_mfma_f32_16x16x32_bf16 v[{a}:{a+3}], v[{FA+4*mt}:{FA+4*mt+3}], v[{FB+4*nt}:{FB+4*nt+3}], v[{a}:{a+3}]")
    e("  s_barrier")
    e("  ; V loads")
    e("  v_lshrrev_b32 v4, 5, v0")
    e("  v_and_b32 v5, 31, v0")
    for j in range(6):
        e(f"  v_add_u32 v6, s35, v4")
        if j: e(f"  v_add_u32 v6, {2*j}, v6")
        e("  v_cmp_le_u32 vcc, 48, v6")
        e("  v_subrev_u32 v7, 48, v6")
        e("  s_nop 0")
        e("  v_cndmask_b32 v7, v6, v7, vcc")
        e("  v_mov_b32 v8, 0")
        e("  v_mov_b32 v9, 196608")
        e("  v_cndmask_b32 v8, v8, v9, vcc")
        e("  v_and_b32 v9, 7, v7")
        e("  v_lshlrev_b32 v9, 1, v9")
        e("  v_xor_b32 v9, v5, v9")
        e("  v_lshlrev_b32 v9, 4, v9")
        e("  v_lshl_add_u32 v9, v7, 9, v9")
        e("  v_add_u32 v9, v9, v8")
        e(f"  s_mul_i32 s47, s34, 6144")
        e(f"  s_add_u32 s47, s47, {VB + j*1024}")
        e("  s_mov_b32 m0, s47")
        e("  s_nop 0")
        e("  buffer_load_dwordx4 v9, s[20:23], s46 offen lds")
    e("  ; Q -> LDS")
    e("  v_lshrrev_b32 v4, 1, v3")
    e("  s_lshl_b32 s47, s56, 3")
    e("  v_add_u32 v4, s47, v4")
    e("  v_xor_b32 v4, v4, v2")
    e("  v_lshlrev_b32 v4, 4, v4")
    e("  v_lshl_add_u32 v4, v2, 9, v4")
    e("  v_and_b32 v5, 1, v3")
    e("  v_lshl_add_u32 v4, v5, 3, v4")
    e("  s_mul_i32 s47, s55, 24576")
    e(f"  s_add_u32 s47, s47, {QB}")
    e("  v_add_u32 v4, s47, v4")
    for mt in range(4):
        e(f"  v_xor_b32 v5, {mt*32}, v4")
        for nt in range(3):
            a = ACC + (mt*3+nt)*4
            e(f"  v_cvt_pk_bf16_f32 v6, v{a}, v{a+1}")
            e(f"  v_cvt_pk_bf16_f32 v7, v{a+2}, v{a+3}")
            e(f"  ds_write_b64 v5, v[6:7] offset:{nt*8192}")
    e("  s_waitcnt lgkmcnt(0)")
    e("  s_barrier")
    if len(sys.argv) > 2:
        e("  v_lshlrev_b32 v4, 4, v0")
        e("  s_lshl_b32 s47, s34, 10")
        e("  v_add_u32 v4, s47, v4")
        e(f"  v_add_u32 v5, {QB}, v4")
        e("  s_mul_i32 s53, s2, 49152")
        for j in range(6):
            e(f"  ds_read_b128 v[40:43], v5 offset:{j*8192}")
            e("  s_waitcnt lgkmcnt(0)")
            e(f"  buffer_store_dwordx4 v[40:43], v4, s[24:27], s53 offen")
            e("  s_add_u32 s53, s53, 8192")
        e("  s_branch K1_END")
    e("  s_cmp_ge_u32 s34, 6")
    e("  s_cbranch_scc1 K1_WOPF")
    e("  s_cmp_ge_u32 s34, 3")
    e("  s_cselect_b32 s55, 1, 0         ; bb")
    e("  s_mul_i32 s47, s55, 3")
    e("  s_sub_u32 s56, s34, s47         ; qt")
    e("  v_xor_b32 v4, v3, v2")
    e("  v_lshlrev_b32 v4, 4, v4")
    e("  v_lshl_add_u32 v4, v2, 9, v4")
    e("  s_mul_i32 s47, s55, 24576")
    e(f"  s_add_u32 s53, s47, {KB}")
    e("  v_add_u32 v5, s53, v4           ; K base")
    e("  s_lshl_b32 s53, s56, 13")
    e("  s_add_u32 s53, s53, s47")
    e(f"  s_add_u32 s53, s53, {QB}")
    e("  v_add_u32 v6, s53, v4           ; Q base")
    SA = 64
    for r in range(12): e(f"  v_mov_b32 v{SA+r}, 0")
    for ks in range(8):
        e(f"  v_xor_b32 v7, {ks*64}, v5")
        e(f"  v_xor_b32 v8, {ks*64}, v6")
        e(f"  ds_read_b128 v[112:115], v8")
        for kt in range(3):
            e(f"  ds_read_b128 v[{40+4*kt}:{43+4*kt}], v7 offset:{kt*8192}")
        e("  s_waitcnt lgkmcnt(0)")
        for kt in range(3):
            a = SA + 4*kt
            e(f"  v_mfma_f32_16x16x32_bf16 v[{a}:{a+3}], v[{40+4*kt}:{43+4*kt}], v[112:115], v[{a}:{a+3}]")
    e("  s_nop 7")
    e("  s_nop 1")
    e("  v_max_f32 v9, v64, v65")
    for r in range(2, 12): e(f"  v_max_f32 v9, v9, v{SA+r}")
    e("  v_mov_b32 v10, v9")
    e("  s_nop 1")
    e("  v_permlane16_swap_b32 v9, v10")
    e("  v_max_f32 v9, v9, v10")
    e("  v_mov_b32 v10, v9")
    e("  s_nop 1")
    e("  v_permlane32_swap_b32 v9, v10")
    e("  v_max_f32 v9, v9, v10")
    e("  s_mov_b32 s47, 0x3db8aa3b       ; log2(e)/16")
    e("  v_mul_f32 v9, s47, v9")
    for r in range(12):
        e(f"  v_fma_f32 v{SA+r}, v{SA+r}, s47, -v9")
    for r in range(12):
        e(f"  v_exp_f32 v{SA+r}, v{SA+r}")
    e("  s_nop 0")
    e("  v_add_f32 v10, v64, v65")
    for r in range(2, 12): e(f"  v_add_f32 v10, v10, v{SA+r}")
    e("  v_mov_b32 v11, v10")
    e("  s_nop 1")
    e("  v_permlane16_swap_b32 v10, v11")
    e("  v_add_f32 v10, v10, v11")
    e("  v_mov_b32 v11, v10")
    e("  s_nop 1")
    e("  v_permlane32_swap_b32 v10, v11")
    e("  v_add_f32 v10, v10, v11")
    e("  v_rcp_f32 v10, v10")
    e("  s_nop 0")
    for r in range(12): e(f"  v_mul_f32 v{SA+r}, v{SA+r}, v10")
    for kt in range(3):
        e(f"  v_cvt_pk_bf16_f32 v{76+2*kt}, v{SA+4*kt}, v{SA+4*kt+1}")
        e(f"  v_cvt_pk_bf16_f32 v{77+2*kt}, v{SA+4*kt+2}, v{SA+4*kt+3}")
    e("  v_lshrrev_b32 v4, 2, v2")
    e("  v_lshl_add_u32 v4, v3, 2, v4    ; row 4g + j/4")
    e("  v_and_b32 v5, 7, v4")
    e("  v_lshlrev_b32 v5, 1, v5")
    e("  v_bfe_u32 v6, v2, 1, 1")
    e("  v_xor_b32 v5, v5, v6")
    e("  v_lshlrev_b32 v5, 4, v5")
    e("  v_lshl_add_u32 v5, v4, 9, v5")
    e("  v_and_b32 v6, 1, v2")
    e("  v_lshl_add_u32 v5, v6, 3, v5")
    e("  s_mul_i32 s47, s55, 24576")
    e(f"  s_add_u32 s47, s47, {VB}")
    e("  v_add_u32 v5, s47, v5           ; V base")
    e("  s_mul_i32 s47, s31, 48")
    e("  s_mul_i32 s53, s30, 6")
    e("  s_add_u32 s47, s47, s53")
    e("  s_add_u32 s47, s47, s34")
    e("  s_lshl_b32 s47, s47, 7")
    e("  s_lshl_b32 s53, s32, 3")
    e("  s_add_u32 s47, s47, s53")
    e("  s_lshl_b32 s47, s47, 10")
    e("  v_lshlrev_b32 v7, 4, v0")
    e("  s_waitcnt vmcnt(0)")
    e("  s_barrier")
    for dp in range(8):
        for h2 in range(2):
            dt = 2*dp + h2
            e(f"  v_xor_b32 v6, {dt*32}, v5")
            A = 84 + 8*h2
            e(f"  ds_read_b64_tr_b16 v[{A}:{A+1}], v6")
            e(f"  ds_read_b64_tr_b16 v[{A+2}:{A+3}], v6 offset:8192")
            e(f"  ds_read_b64_tr_b16 v[{A+4}:{A+5}], v6 offset:16384")
        e("  s_waitcnt lgkmcnt(0)")
        for h2 in range(2):
            A = 84 + 8*h2
            O = 100 + 4*h2
            e(f"  v_mfma_f32_16x16x32_bf16 v[{O}:{O+3}], v[{A}:{A+3}], v[76:79], 0")
            e("  s_nop 7")
            e(f"  v_mfma_f32_16x16x16_bf16 v[{O}:{O+3}], v[{A+4}:{A+5}], v[80:81], v[{O}:{O+3}]")
        e("  s_nop 7")
        e("  s_nop 1")
        e("  v_cvt_pk_bf16_f32 v108, v100, v101")
        e("  v_cvt_pk_bf16_f32 v109, v102, v103")
        e("  v_cvt_pk_bf16_f32 v110, v104, v105")
        e("  v_cvt_pk_bf16_f32 v111, v106, v107")
        e(f"  buffer_store_dwordx4 v[108:111], v7, s[24:27], s47 offen")
        e("  s_add_u32 s47, s47, 1024")
        e("  s_nop 0")
    e("  s_branch K1_END")
    e("K1_WOPF:")
    e("  s_waitcnt vmcnt(0)")
    e("  s_barrier")
    e("  v_lshlrev_b32 v5, 4, v0")
    e("  s_lshr_b32 s47, s2, 3")
    e("  s_mul_i32 s47, s47, 114688")
    e("  s_sub_u32 s53, s34, 6")
    e("  s_mul_i32 s53, s53, 57344")
    e("  s_add_u32 s47, s47, s53")
    for j in range(56):
        e("  buffer_load_dwordx4 v[144:147], v5, s[60:63], s47 offen")
        e("  s_add_u32 s47, s47, 1024")
    e("K1_END:")
    e("  s_waitcnt vmcnt(0)")
    e("  s_endpgm")


def gen_k2():
    e(".p2align 8")
    e(".globl oproj_kernel")
    e(".type oproj_kernel,@function")
    e("oproj_kernel:")
    e("  s_cmp_ge_u32 s2, 224")
    e("  s_cbranch_scc1 K2_END")
    e("  s_and_b32 s28, s2, 7            ; x")
    e("  s_lshr_b32 s29, s2, 3           ; 0..27")
    e("  s_mov_b32 s30, 0")
    for t in range(1, 4):
        e(f"  s_cmp_ge_u32 s29, {7*t}")
        e(f"  s_cselect_b32 s30, {t}, s30    ; rg_local")
    e("  s_mul_i32 s31, s30, 7")
    e("  s_sub_u32 s31, s29, s31         ; cg")
    e("  s_lshr_b32 s32, s28, 2          ; side")
    e("  s_and_b32 s33, s28, 3")
    e("  s_lshl_b32 s33, s33, 2")
    e("  s_add_u32 s33, s33, s30         ; rg (0..15)")
    e("  s_mul_i32 s35, s32, 40")
    e("  s_load_dwordx2 s[36:37], s[0:1], s35 offset:32   ; wo")
    e("  s_load_dwordx2 s[38:39], s[0:1], %d" % KERNARG_OUT)
    e("  s_load_dwordx2 s[40:41], s[0:1], %d" % KERNARG_WS)
    e("  v_lshrrev_b32 v1, 6, v0")
    e("  v_and_b32 v0, 63, v0")
    e("  v_readfirstlane_b32 s34, v1")
    e("  s_waitcnt lgkmcnt(0)")
    for (d, src, n) in ((8, 36, 3670016), (12, 38, 1376256), (16, 40, 12582912)):
        e(f"  s_mov_b32 s{d}, s{src}")
        e(f"  s_mov_b32 s{d+1}, s{src+1}")
        e(f"  s_mov_b32 s{d+2}, {n}")
        e(f"  s_mov_b32 s{d+3}, 0x00020000")
    e("  v_and_b32 v2, 15, v0")
    e("  v_lshrrev_b32 v3, 4, v0")
    e("  v_lshrrev_b32 v4, 3, v0")
    e("  v_and_b32 v5, 7, v0")
    e("  v_bfe_u32 v6, v4, 1, 2")
    e("  v_lshlrev_b32 v6, 1, v6")
    e("  v_xor_b32 v5, v5, v6")
    e("  v_mul_u32_u24 v4, 896, v4")
    e("  v_lshl_add_u32 v4, v5, 4, v4")
    e("  s_lshl_b32 s42, s31, 7")
    e("  v_add_u32 v10, s42, v4")
    e("  s_mul_i32 s43, s34, %d          ; wave k base bytes" % (16*32*896))
    e("  s_lshl_b32 s44, s34, 14")
    e("  v_lshlrev_b32 v11, 4, v0")
    e("  s_mul_i32 s45, s32, 48")
    e("  s_mul_i32 s46, s33, 3")
    e("  s_add_u32 s45, s45, s46")
    e("  s_lshl_b32 s45, s45, 7")
    e("  s_lshl_b32 s46, s34, 4")
    e("  s_add_u32 s45, s45, s46")
    e("  s_lshl_b32 s45, s45, 10")
    e("  v_lshrrev_b32 v4, 2, v2")
    e("  v_lshl_add_u32 v4, v3, 2, v4")
    e("  v_bfe_u32 v5, v4, 1, 2")
    e("  v_lshlrev_b32 v5, 1, v5")
    e("  v_bfe_u32 v6, v2, 1, 1")
    e("  v_xor_b32 v5, v5, v6")
    e("  v_lshlrev_b32 v5, 4, v5")
    e("  v_lshl_add_u32 v5, v4, 7, v5")
    e("  v_and_b32 v6, 1, v2")
    e("  v_lshl_add_u32 v5, v6, 3, v5")
    e("  v_add_u32 v5, s44, v5")
    for nt in range(4): e(f"  v_xor_b32 v{12+nt}, {nt*32}, v5")
    ACC = 64
    for r in range(48): e(f"  v_mov_b32 v{ACC+r}, 0")
    AF = 112
    def issue(t):
        sl = t % 4
        e(f"  s_add_u32 s47, s43, {t*32*896}")
        for q in range(4):
            e(f"  s_add_u32 s48, s44, {sl*4096 + q*1024}")
            e("  s_mov_b32 m0, s48")
            e(f"  s_add_u32 s49, s47, {q*8*896}")
            e("  buffer_load_dwordx4 v10, s[8:11], s49 offen lds")
        e(f"  s_add_u32 s47, s45, {t*1024}")
        for mt in range(3):
            a = AF + sl*12 + mt*4
            if mt: e(f"  s_add_u32 s47, s47, {128*1024}")
            e(f"  buffer_load_dwordx4 v[{a}:{a+3}], v11, s[16:19], s47 offen")
    for t in range(3): issue(t)
    for t in range(16):
        sl = t % 4
        if t + 3 < 16: issue(t + 3)
        rem = min(16, t + 4) - (t + 1)
        e(f"  s_waitcnt vmcnt({7*rem})")
        for nt in range(4):
            e(f"  ds_read_b64_tr_b16 v[{40+4*nt}:{41+4*nt}], v{12+nt} offset:{sl*4096}")
            e(f"  ds_read_b64_tr_b16 v[{42+4*nt}:{43+4*nt}], v{12+nt} offset:{sl*4096+2048}")
        for nt in range(4):
            e(f"  s_waitcnt lgkmcnt({2*(3-nt)})")
            for mt in range(3):
                a = ACC + (mt*4+nt)*4
                A = AF + sl*12 + mt*4
                e(f"  v_mfma_f32_16x16x32_bf16 v[{a}:{a+3}], v[{A}:{A+3}], v[{40+4*nt}:{43+4*nt}], v[{a}:{a+3}]")
    e("  s_nop 7")
    e("  s_nop 1")
    e("  s_barrier")
    e("  s_mul_i32 s47, s34, 12288")
    e("  v_add_u32 v4, s47, v11")
    for tl in range(12):
        a = ACC + tl*4
        e(f"  ds_write_b128 v4, v[{a}:{a+3}] offset:{tl*1024}")
    e("  s_waitcnt lgkmcnt(0)")
    e("  s_barrier")
    e("  s_cmp_ge_u32 s34, 6")
    e("  s_cbranch_scc1 K2_END")
    e("  s_lshl_b32 s47, s34, 11")
    e("  v_add_u32 v4, s47, v11")
    e("  v_add_u32 v16, 49152, v4")
    e("  v_lshlrev_b32 v5, 2, v3")
    e("  s_mul_i32 s47, s33, 48")
    e("  v_add_u32 v5, s47, v5")
    e("  v_mul_u32_u24 v5, 1792, v5")
    e("  v_lshl_add_u32 v5, v2, 1, v5")
    e("  s_mul_i32 s47, s32, 896")
    e("  s_lshl_b32 s48, s31, 7")
    e("  s_add_u32 s47, s47, s48")
    e("  s_lshr_b32 s48, s34, 1          ; mt")
    e("  s_mul_i32 s48, s48, %d" % (16*1792))
    e("  s_add_u32 s47, s47, s48")
    e("  s_and_b32 s48, s34, 1")
    e("  s_lshl_b32 s48, s48, 6")
    e("  s_add_u32 s47, s47, s48")
    for r in range(4): e(f"  s_add_u32 s{50+r}, s47, {r*1792}")
    for u in range(2):
        for w in range(8):
            e(f"  ds_read_b128 v[{20+4*w}:{23+4*w}], v{4 if w<4 else 16} offset:{(w%4)*12288 + u*1024}")
        e("  s_waitcnt lgkmcnt(0)")
        for w in range(1, 8):
            for r in range(4): e(f"  v_add_f32 v{20+r}, v{20+r}, v{20+4*w+r}")
        e("  v_cvt_pk_bf16_f32 v6, v20, v21")
        e("  v_cvt_pk_bf16_f32 v7, v22, v23")
        e("  v_lshrrev_b32 v8, 16, v6")
        e("  v_lshrrev_b32 v9, 16, v7")
        for r, v in enumerate((6, 8, 7, 9)):
            e(f"  buffer_store_short v{v}, v5, s[12:15], s{50+r} offen offset:{u*32}")
    e("K2_END:")
    e("  s_endpgm")

def kd(name, vgpr):
    e(f".amdhsa_kernel {name}")
    e(f"  .amdhsa_next_free_vgpr {vgpr}")
    e("  .amdhsa_next_free_sgpr 102")
    e(f"  .amdhsa_accum_offset {vgpr}")
    e("  .amdhsa_group_segment_fixed_size 0")
    e("  .amdhsa_kernarg_size 104")
    e("  .amdhsa_user_sgpr_count 2")
    e("  .amdhsa_user_sgpr_kernarg_segment_ptr 1")
    e("  .amdhsa_system_sgpr_workgroup_id_x 1")
    e(".end_amdhsa_kernel")

hdr = open("concat_heads__gqa_block_cached__gqa_block_cached__near_ridge.s.ref").read().split("; Override launch")[0]
e(hdr.rstrip())
e("; @launch kernel=attn_kernel grid=(256,1,1) block=(512,1,1) lds=163840")
e("; @launch kernel=oproj_kernel grid=(224,1,1) block=(512,1,1) lds=131072")
e('.amdgcn_target "amdgcn-amd-amdhsa--gfx950"')
e(".text")
gen_k1()
gen_k2()
e('.section .rodata,"a"')
e(".p2align 6")
kd("attn_kernel", 160)
e(".p2align 6")
kd("oproj_kernel", 160)
open(sys.argv[1], "w").write("\n".join(L) + "\n")
```

```python
import sys
L = []
def e(s=""): L.append(s)

KERNARG_OUT, KERNARG_WS = 80, 96

def gen_k1():
    e(".p2align 8")
    e(".globl attn_kernel")
    e(".type attn_kernel,@function")
    e("attn_kernel:")
    e("  s_cmp_ge_u32 s2, 256")
    e("  s_cbranch_scc1 K1_END")
    e("  s_and_b32 s64, s2, 7            ; xcd")
    e("  s_lshr_b32 s65, s2, 3           ; r")
    e("  s_and_b32 s32, s64, 1")
    e("  s_lshl_b32 s32, s32, 3")
    e("  s_and_b32 s29, s65, 7")
    e("  s_add_u32 s32, s32, s29         ; h")
    e("  s_lshr_b32 s28, s32, 1          ; hk")
    e("  s_lshr_b32 s30, s64, 1")
    e("  s_lshl_b32 s30, s30, 1")
    e("  s_bfe_u32 s29, s65, 0x10003")
    e("  s_add_u32 s30, s30, s29         ; bp")
    e("  s_lshr_b32 s31, s65, 4          ; side")
    e("  s_mul_i32 s33, s31, 40")
    e("  s_load_dwordx8 s[36:43], s[0:1], s33")
    e("  s_load_dwordx2 s[44:45], s[0:1], %d" % KERNARG_WS)
    e("  s_lshr_b32 s57, s64, 2")
    e("  s_mul_i32 s57, s57, 40")
    e("  s_load_dwordx2 s[58:59], s[0:1], s57 offset:32")
    e("  v_mov_b32 v140, v0")
    e("  v_lshrrev_b32 v1, 6, v0")
    e("  v_and_b32 v0, 63, v0            ; lane")
    e("  v_readfirstlane_b32 s34, v1")
    e("  s_waitcnt lgkmcnt(0)")
    for (d, src, n) in ((8, 36, 688128), (16, 38, 3145728), (20, 40, 3145728), (12, 42, 3670016), (24, 44, 12582912), (60, 58, 3670016)):
        e(f"  s_mov_b32 s{d}, s{src}")
        e(f"  s_mov_b32 s{d+1}, s{src+1}")
        e(f"  s_mov_b32 s{d+2}, {n}")
        e(f"  s_mov_b32 s{d+3}, 0x00020000")
    e("  v_and_b32 v2, 15, v0            ; i = l%16")
    e("  v_lshrrev_b32 v3, 4, v0         ; g = l/16")
    KB, SB, SBS, QB, VB = 0, 49152, 22528, 114688, 49152
    XS = 16384
    e("  ; K prefetch")
    e("  v_lshrrev_b32 v4, 5, v0         ; rr")
    e("  v_and_b32 v5, 31, v0            ; p")
    e("  s_mul_i32 s35, s34, 12")
    e("  s_lshl_b32 s46, s30, 1          ; 2bp")
    e("  s_lshl_b32 s46, s46, 3")
    e("  s_add_u32 s46, s46, s28         ; (2bp*8+hk)")
    e("  s_mul_i32 s46, s46, 24576")
    for j in range(6):
        e(f"  v_add_u32 v6, s35, v4")
        if j: e(f"  v_add_u32 v6, {2*j}, v6       ; R")
        e("  v_cmp_le_u32 vcc, 48, v6")
        e("  v_subrev_u32 v7, 48, v6")
        e("  s_nop 0")
        e("  v_cndmask_b32 v7, v6, v7, vcc   ; key")
        e("  v_mov_b32 v8, 0")
        e("  v_mov_b32 v9, 196608")
        e("  v_cndmask_b32 v8, v8, v9, vcc")
        e("  v_and_b32 v9, 15, v7")
        e("  v_xor_b32 v9, v5, v9            ; c")
        e("  v_lshlrev_b32 v9, 4, v9")
        e("  v_lshl_add_u32 v9, v7, 9, v9")
        e("  v_add_u32 v9, v9, v8")
        e(f"  s_mul_i32 s47, s34, 6144")
        e(f"  s_add_u32 s47, s47, {KB + j*1024}")
        e("  s_mov_b32 m0, s47")
        e("  s_nop 0")
        e("  buffer_load_dwordx4 v9, s[16:19], s46 offen lds")
    e("  s_cmp_ge_u32 s34, 6")
    e("  s_cselect_b32 s47, 6, 0")
    e("  s_sub_u32 s47, s34, s47         ; w%6")
    e("  s_lshl_b32 s48, s47, 4          ; rowbase")
    e("  v_lshrrev_b32 v4, 2, v0         ; row")
    e("  v_and_b32 v5, 3, v0")
    e("  v_bfe_u32 v6, v4, 1, 2")
    e("  v_xor_b32 v5, v5, v6            ; c")
    e("  s_mul_i32 s49, s30, 96")
    e("  s_add_u32 s49, s49, s48")
    e("  v_add_u32 v4, s49, v4")
    e("  v_mul_u32_u24 v4, 896, v4")
    e("  v_lshl_add_u32 v10, v5, 4, v4   ; vXoff")
    e("  s_lshl_b32 s48, s48, 6")
    e("  v_lshrrev_b32 v4, 5, v0         ; rr")
    e("  v_and_b32 v5, 31, v0")
    e("  s_lshl_b32 s50, s34, 2")
    for i in range(2):
        e(f"  v_add_u32 v6, s50, v4")
        if i: e(f"  v_add_u32 v6, 2, v6")
        e("  v_and_b32 v7, 3, v6")
        e("  v_bfe_u32 v8, v6, 3, 1")
        e("  v_lshl_or_b32 v7, v8, 2, v7")
        e("  v_lshlrev_b32 v7, 1, v7         ; swz")
        e("  v_xor_b32 v7, v5, v7            ; c")
        e("  v_lshlrev_b32 v7, 4, v7")
        e("  v_lshl_add_u32 v7, v6, 13, v7")
        e("  s_lshl_b32 s51, s32, 9")
        e(f"  v_add_u32 v{11+i}, s51, v7      ; vWoff{i}")
    e("  s_lshl_b32 s50, s34, 11")
    def issue_stage(s):
        b = s % 4
        base = SB + b * SBS
        e(f"  s_mov_b32 s52, {s*262144}")
        e(f"  s_add_u32 s53, s50, {base}")
        e("  s_mov_b32 m0, s53")
        e(f"  s_mov_b32 s54, {s*64}")
        e("  buffer_load_dwordx4 v11, s[12:15], s52 offen lds")
        e(f"  s_add_u32 s53, s50, {base+1024}")
        e("  s_mov_b32 m0, s53")
        e("  s_nop 0")
        e("  buffer_load_dwordx4 v12, s[12:15], s52 offen lds")
        e(f"  s_add_u32 s53, s48, {base+XS}")
        e("  s_mov_b32 m0, s53")
        e("  s_nop 0")
        e("  buffer_load_dwordx4 v10, s[8:11], s54 offen lds")
    issue_stage(0); issue_stage(1); issue_stage(2)
    e("  s_and_b32 s55, s34, 1           ; mi")
    e("  s_lshr_b32 s56, s34, 1          ; ni")
    e("  v_bfe_u32 v4, v2, 1, 2")
    e("  v_xor_b32 v4, v3, v4")
    e("  v_lshlrev_b32 v4, 4, v4")
    e("  v_lshl_add_u32 v4, v2, 6, v4")
    e("  s_mul_i32 s47, s55, 3072")
    for b in range(1):
        e(f"  s_add_u32 s53, s47, {SB + b*SBS + XS}")
        e(f"  v_add_u32 v{56+b}, s53, v4")
    e("  v_lshrrev_b32 v4, 2, v2         ; j/4")
    e("  v_lshl_add_u32 v4, v3, 3, v4    ; row(half0)")
    for half in range(2):
        if half: e("  v_add_u32 v4, 4, v4")
        e("  v_and_b32 v5, 3, v4")
        e("  v_bfe_u32 v6, v4, 3, 1")
        e("  v_lshl_or_b32 v5, v6, 2, v5")
        e("  v_lshlrev_b32 v5, 1, v5         ; swz")
        e("  v_bfe_u32 v6, v2, 1, 1          ; (j%4)/2")
        e("  s_lshl_b32 s47, s56, 3")
        e("  v_add_u32 v6, s47, v6")
        e("  v_xor_b32 v5, v5, v6")
        e("  v_lshlrev_b32 v5, 4, v5")
        e("  v_lshl_add_u32 v5, v4, 9, v5")
        e("  v_and_b32 v6, 1, v2")
        e("  v_lshl_add_u32 v5, v6, 3, v5")
        for b in range(1):
            for mt in range(4):
                r = 16 + b*8 + half*4 + mt
                e(f"  v_xor_b32 v6, {mt*32}, v5")
                e(f"  v_add_u32 v{r}, {SB + b*SBS}, v6")
    ACC = 64
    for r in range(48): e(f"  v_mov_b32 v{ACC+r}, 0")
    FA, FB = 124, 112
    e("  s_mov_b32 s66, 0               ; stage")
    e("  s_mov_b32 s67, 0")
    e(f"  s_mov_b32 s68, {3*SBS}")
    e(f"  s_mov_b32 s52, {3*262144}")
    e(f"  s_mov_b32 s54, {3*64}")
    e("K1_LOOP:")
    e("  s_waitcnt vmcnt(6)")
    e("  s_barrier")
    e(f"  s_add_u32 s53, s50, s68")
    e(f"  s_add_u32 s53, s53, {SB}")
    e("  s_mov_b32 m0, s53")
    e("  v_add_u32 v57, s67, v56")
    e("  buffer_load_dwordx4 v11, s[12:15], s52 offen lds")
    e("  s_add_u32 s53, s53, 1024")
    e("  s_mov_b32 m0, s53")
    e(f"  s_add_u32 s53, s48, s68")
    e("  buffer_load_dwordx4 v12, s[12:15], s52 offen lds")
    e(f"  s_add_u32 s53, s53, {SB+XS}")
    e("  s_mov_b32 m0, s53")
    for r in range(8): e(f"  v_add_u32 v{24+r}, s67, v{16+r}")
    e("  buffer_load_dwordx4 v10, s[8:11], s54 offen lds")
    for nt in range(3):
        e(f"  ds_read_b128 v[{FB+4*nt}:{FB+4*nt+3}], v57 offset:{nt*1024}")
    for mt in range(4):
        for half in range(2):
            e(f"  ds_read_b64_tr_b16 v[{FA+4*mt+2*half}:{FA+4*mt+2*half+1}], v{24+half*4+mt}")
    e("  s_add_u32 s52, s52, 262144")
    e("  s_add_u32 s54, s54, 64")
    e(f"  s_add_u32 s67, s67, {SBS}")
    e(f"  s_cmp_eq_u32 s67, {4*SBS}")
    e("  s_cselect_b32 s67, 0, s67")
    e(f"  s_add_u32 s68, s68, {SBS}")
    e(f"  s_cmp_eq_u32 s68, {4*SBS}")
    e("  s_cselect_b32 s68, 0, s68")
    for mt in range(4):
        e(f"  s_waitcnt lgkmcnt({2*(3-mt)})")
        for nt in range(3):
            a = ACC + (mt*3+nt)*4
            e(f"  v_mfma_f32_16x16x32_bf16 v[{a}:{a+3}], v[{FA+4*mt}:{FA+4*mt+3}], v[{FB+4*nt}:{FB+4*nt+3}], v[{a}:{a+3}]")
    e("  s_add_u32 s66, s66, 1")
    e("  s_cmp_lt_u32 s66, 14")
    e("  s_cbranch_scc1 K1_LOOP")
    e("  s_waitcnt vmcnt(0)")
    e("  s_barrier")
    e("  ; V loads")
    e("  v_lshrrev_b32 v4, 5, v0")
    e("  v_and_b32 v5, 31, v0")
    for j in range(6):
        e(f"  v_add_u32 v6, s35, v4")
        if j: e(f"  v_add_u32 v6, {2*j}, v6")
        e("  v_cmp_le_u32 vcc, 48, v6")
        e("  v_subrev_u32 v7, 48, v6")
        e("  s_nop 0")
        e("  v_cndmask_b32 v7, v6, v7, vcc")
        e("  v_mov_b32 v8, 0")
        e("  v_mov_b32 v9, 196608")
        e("  v_cndmask_b32 v8, v8, v9, vcc")
        e("  v_and_b32 v9, 7, v7")
        e("  v_lshlrev_b32 v9, 1, v9")
        e("  v_xor_b32 v9, v5, v9")
        e("  v_lshlrev_b32 v9, 4, v9")
        e("  v_lshl_add_u32 v9, v7, 9, v9")
        e("  v_add_u32 v9, v9, v8")
        e(f"  s_mul_i32 s47, s34, 6144")
        e(f"  s_add_u32 s47, s47, {VB + j*1024}")
        e("  s_mov_b32 m0, s47")
        e("  s_nop 0")
        e("  buffer_load_dwordx4 v9, s[20:23], s46 offen lds")
    e("  ; Q -> LDS")
    e("  v_lshrrev_b32 v4, 1, v3")
    e("  s_lshl_b32 s47, s56, 3")
    e("  v_add_u32 v4, s47, v4")
    e("  v_xor_b32 v4, v4, v2")
    e("  v_lshlrev_b32 v4, 4, v4")
    e("  v_lshl_add_u32 v4, v2, 9, v4")
    e("  v_and_b32 v5, 1, v3")
    e("  v_lshl_add_u32 v4, v5, 3, v4")
    e("  s_mul_i32 s47, s55, 24576")
    e(f"  s_add_u32 s47, s47, {QB}")
    e("  v_add_u32 v4, s47, v4")
    for mt in range(4):
        e(f"  v_xor_b32 v5, {mt*32}, v4")
        for nt in range(3):
            a = ACC + (mt*3+nt)*4
            e(f"  v_cvt_pk_bf16_f32 v6, v{a}, v{a+1}")
            e(f"  v_cvt_pk_bf16_f32 v7, v{a+2}, v{a+3}")
            e(f"  ds_write_b64 v5, v[6:7] offset:{nt*8192}")
    e("  s_waitcnt lgkmcnt(0)")
    e("  s_barrier")
    if len(sys.argv) > 2:
        e("  v_lshlrev_b32 v4, 4, v0")
        e("  s_lshl_b32 s47, s34, 10")
        e("  v_add_u32 v4, s47, v4")
        e(f"  v_add_u32 v5, {QB}, v4")
        e("  s_mul_i32 s53, s2, 49152")
        for j in range(6):
            e(f"  ds_read_b128 v[40:43], v5 offset:{j*8192}")
            e("  s_waitcnt lgkmcnt(0)")
            e(f"  buffer_store_dwordx4 v[40:43], v4, s[24:27], s53 offen")
            e("  s_add_u32 s53, s53, 8192")
        e("  s_branch K1_END")
    e("  s_cmp_ge_u32 s34, 6")
    e("  s_cbranch_scc1 K1_WOPF")
    e("  s_cmp_ge_u32 s34, 3")
    e("  s_cselect_b32 s55, 1, 0         ; bb")
    e("  s_mul_i32 s47, s55, 3")
    e("  s_sub_u32 s56, s34, s47         ; qt")
    e("  v_xor_b32 v4, v3, v2")
    e("  v_lshlrev_b32 v4, 4, v4")
    e("  v_lshl_add_u32 v4, v2, 9, v4")
    e("  s_mul_i32 s47, s55, 24576")
    e(f"  s_add_u32 s53, s47, {KB}")
    e("  v_add_u32 v5, s53, v4           ; K base")
    e("  s_lshl_b32 s53, s56, 13")
    e("  s_add_u32 s53, s53, s47")
    e(f"  s_add_u32 s53, s53, {QB}")
    e("  v_add_u32 v6, s53, v4           ; Q base")
    SA = 64
    for r in range(12): e(f"  v_mov_b32 v{SA+r}, 0")
    for ks in range(8):
        e(f"  v_xor_b32 v7, {ks*64}, v5")
        e(f"  v_xor_b32 v8, {ks*64}, v6")
        e(f"  ds_read_b128 v[112:115], v8")
        for kt in range(3):
            e(f"  ds_read_b128 v[{40+4*kt}:{43+4*kt}], v7 offset:{kt*8192}")
        e("  s_waitcnt lgkmcnt(0)")
        for kt in range(3):
            a = SA + 4*kt
            e(f"  v_mfma_f32_16x16x32_bf16 v[{a}:{a+3}], v[{40+4*kt}:{43+4*kt}], v[112:115], v[{a}:{a+3}]")
    e("  s_nop 7")
    e("  s_nop 1")
    e("  v_max_f32 v9, v64, v65")
    for r in range(2, 12): e(f"  v_max_f32 v9, v9, v{SA+r}")
    e("  v_mov_b32 v10, v9")
    e("  s_nop 1")
    e("  v_permlane16_swap_b32 v9, v10")
    e("  v_max_f32 v9, v9, v10")
    e("  v_mov_b32 v10, v9")
    e("  s_nop 1")
    e("  v_permlane32_swap_b32 v9, v10")
    e("  v_max_f32 v9, v9, v10")
    e("  s_mov_b32 s47, 0x3db8aa3b       ; log2(e)/16")
    e("  v_mul_f32 v9, s47, v9")
    for r in range(12):
        e(f"  v_fma_f32 v{SA+r}, v{SA+r}, s47, -v9")
    for r in range(12):
        e(f"  v_exp_f32 v{SA+r}, v{SA+r}")
    e("  s_nop 0")
    e("  v_add_f32 v10, v64, v65")
    for r in range(2, 12): e(f"  v_add_f32 v10, v10, v{SA+r}")
    e("  v_mov_b32 v11, v10")
    e("  s_nop 1")
    e("  v_permlane16_swap_b32 v10, v11")
    e("  v_add_f32 v10, v10, v11")
    e("  v_mov_b32 v11, v10")
    e("  s_nop 1")
    e("  v_permlane32_swap_b32 v10, v11")
    e("  v_add_f32 v10, v10, v11")
    e("  v_rcp_f32 v10, v10")
    e("  s_nop 0")
    for r in range(12): e(f"  v_mul_f32 v{SA+r}, v{SA+r}, v10")
    for kt in range(3):
        e(f"  v_cvt_pk_bf16_f32 v{76+2*kt}, v{SA+4*kt}, v{SA+4*kt+1}")
        e(f"  v_cvt_pk_bf16_f32 v{77+2*kt}, v{SA+4*kt+2}, v{SA+4*kt+3}")
    e("  v_lshrrev_b32 v4, 2, v2")
    e("  v_lshl_add_u32 v4, v3, 2, v4    ; row 4g + j/4")
    e("  v_and_b32 v5, 7, v4")
    e("  v_lshlrev_b32 v5, 1, v5")
    e("  v_bfe_u32 v6, v2, 1, 1")
    e("  v_xor_b32 v5, v5, v6")
    e("  v_lshlrev_b32 v5, 4, v5")
    e("  v_lshl_add_u32 v5, v4, 9, v5")
    e("  v_and_b32 v6, 1, v2")
    e("  v_lshl_add_u32 v5, v6, 3, v5")
    e("  s_mul_i32 s47, s55, 24576")
    e(f"  s_add_u32 s47, s47, {VB}")
    e("  v_add_u32 v5, s47, v5           ; V base")
    e("  s_mul_i32 s47, s31, 48")
    e("  s_mul_i32 s53, s30, 6")
    e("  s_add_u32 s47, s47, s53")
    e("  s_add_u32 s47, s47, s34")
    e("  s_lshl_b32 s47, s47, 7")
    e("  s_lshl_b32 s53, s32, 3")
    e("  s_add_u32 s47, s47, s53")
    e("  s_lshl_b32 s47, s47, 10")
    e("  v_lshlrev_b32 v7, 4, v0")
    e("  s_waitcnt vmcnt(0)")
    e("  s_barrier")
    for dp in range(8):
        for h2 in range(2):
            dt = 2*dp + h2
            e(f"  v_xor_b32 v6, {dt*32}, v5")
            A = 84 + 8*h2
            e(f"  ds_read_b64_tr_b16 v[{A}:{A+1}], v6")
            e(f"  ds_read_b64_tr_b16 v[{A+2}:{A+3}], v6 offset:8192")
            e(f"  ds_read_b64_tr_b16 v[{A+4}:{A+5}], v6 offset:16384")
        e("  s_waitcnt lgkmcnt(0)")
        for h2 in range(2):
            A = 84 + 8*h2
            O = 100 + 4*h2
            e(f"  v_mfma_f32_16x16x32_bf16 v[{O}:{O+3}], v[{A}:{A+3}], v[76:79], 0")
            e("  s_nop 7")
            e(f"  v_mfma_f32_16x16x16_bf16 v[{O}:{O+3}], v[{A+4}:{A+5}], v[80:81], v[{O}:{O+3}]")
        e("  s_nop 7")
        e("  s_nop 1")
        e("  v_cvt_pk_bf16_f32 v108, v100, v101")
        e("  v_cvt_pk_bf16_f32 v109, v102, v103")
        e("  v_cvt_pk_bf16_f32 v110, v104, v105")
        e("  v_cvt_pk_bf16_f32 v111, v106, v107")
        e(f"  buffer_store_dwordx4 v[108:111], v7, s[24:27], s47 offen")
        e("  s_add_u32 s47, s47, 1024")
        e("  s_nop 0")
    e("  s_branch K1_END")
    e("K1_WOPF:")
    e("  s_waitcnt vmcnt(0)")
    e("  s_barrier")
    e("  v_lshlrev_b32 v5, 4, v0")
    e("  s_lshr_b32 s47, s2, 3")
    e("  s_mul_i32 s47, s47, 114688")
    e("  s_sub_u32 s53, s34, 6")
    e("  s_mul_i32 s53, s53, 57344")
    e("  s_add_u32 s47, s47, s53")
    for j in range(56):
        e("  buffer_load_dwordx4 v[144:147], v5, s[60:63], s47 offen")
        e("  s_add_u32 s47, s47, 1024")
    e("K1_END:")
    e("  s_waitcnt vmcnt(0)")
    e("  s_endpgm")


def gen_k2():
    e(".p2align 8")
    e(".globl oproj_kernel")
    e(".type oproj_kernel,@function")
    e("oproj_kernel:")
    e("  s_cmp_ge_u32 s2, 224")
    e("  s_cbranch_scc1 K2_END")
    e("  s_and_b32 s28, s2, 7            ; x")
    e("  s_lshr_b32 s29, s2, 3           ; 0..27")
    e("  s_mov_b32 s30, 0")
    for t in range(1, 4):
        e(f"  s_cmp_ge_u32 s29, {7*t}")
        e(f"  s_cselect_b32 s30, {t}, s30    ; rg_local")
    e("  s_mul_i32 s31, s30, 7")
    e("  s_sub_u32 s31, s29, s31         ; cg")
    e("  s_lshr_b32 s32, s28, 2          ; side")
    e("  s_and_b32 s33, s28, 3")
    e("  s_lshl_b32 s33, s33, 2")
    e("  s_add_u32 s33, s33, s30         ; rg (0..15)")
    e("  s_mul_i32 s35, s32, 40")
    e("  s_load_dwordx2 s[36:37], s[0:1], s35 offset:32   ; wo")
    e("  s_load_dwordx2 s[38:39], s[0:1], %d" % KERNARG_OUT)
    e("  s_load_dwordx2 s[40:41], s[0:1], %d" % KERNARG_WS)
    e("  v_lshrrev_b32 v1, 6, v0")
    e("  v_and_b32 v0, 63, v0")
    e("  v_readfirstlane_b32 s34, v1")
    e("  s_waitcnt lgkmcnt(0)")
    for (d, src, n) in ((8, 36, 3670016), (12, 38, 1376256), (16, 40, 12582912)):
        e(f"  s_mov_b32 s{d}, s{src}")
        e(f"  s_mov_b32 s{d+1}, s{src+1}")
        e(f"  s_mov_b32 s{d+2}, {n}")
        e(f"  s_mov_b32 s{d+3}, 0x00020000")
    e("  v_and_b32 v2, 15, v0")
    e("  v_lshrrev_b32 v3, 4, v0")
    e("  v_lshrrev_b32 v4, 3, v0")
    e("  v_and_b32 v5, 7, v0")
    e("  v_bfe_u32 v6, v4, 1, 2")
    e("  v_lshlrev_b32 v6, 1, v6")
    e("  v_xor_b32 v5, v5, v6")
    e("  v_mul_u32_u24 v4, 896, v4")
    e("  v_lshl_add_u32 v4, v5, 4, v4")
    e("  s_lshl_b32 s42, s31, 7")
    e("  v_add_u32 v10, s42, v4")
    e("  s_mul_i32 s43, s34, %d          ; wave k base bytes" % (16*32*896))
    e("  s_lshl_b32 s44, s34, 14")
    e("  v_lshlrev_b32 v11, 4, v0")
    e("  s_mul_i32 s45, s32, 48")
    e("  s_mul_i32 s46, s33, 3")
    e("  s_add_u32 s45, s45, s46")
    e("  s_lshl_b32 s45, s45, 7")
    e("  s_lshl_b32 s46, s34, 4")
    e("  s_add_u32 s45, s45, s46")
    e("  s_lshl_b32 s45, s45, 10")
    e("  v_lshrrev_b32 v4, 2, v2")
    e("  v_lshl_add_u32 v4, v3, 2, v4")
    e("  v_bfe_u32 v5, v4, 1, 2")
    e("  v_lshlrev_b32 v5, 1, v5")
    e("  v_bfe_u32 v6, v2, 1, 1")
    e("  v_xor_b32 v5, v5, v6")
    e("  v_lshlrev_b32 v5, 4, v5")
    e("  v_lshl_add_u32 v5, v4, 7, v5")
    e("  v_and_b32 v6, 1, v2")
    e("  v_lshl_add_u32 v5, v6, 3, v5")
    e("  v_add_u32 v5, s44, v5")
    for nt in range(4): e(f"  v_xor_b32 v{12+nt}, {nt*32}, v5")
    ACC = 64
    for r in range(48): e(f"  v_mov_b32 v{ACC+r}, 0")
    AF = 112
    def issue(t):
        sl = t % 4
        e(f"  s_add_u32 s47, s43, {t*32*896}")
        for q in range(4):
            e(f"  s_add_u32 s48, s44, {sl*4096 + q*1024}")
            e("  s_mov_b32 m0, s48")
            e(f"  s_add_u32 s49, s47, {q*8*896}")
            e("  buffer_load_dwordx4 v10, s[8:11], s49 offen lds")
        e(f"  s_add_u32 s47, s45, {t*1024}")
        for mt in range(3):
            a = AF + sl*12 + mt*4
            if mt: e(f"  s_add_u32 s47, s47, {128*1024}")
            e(f"  buffer_load_dwordx4 v[{a}:{a+3}], v11, s[16:19], s47 offen")
    for t in range(3): issue(t)
    for t in range(16):
        sl = t % 4
        if t + 3 < 16: issue(t + 3)
        rem = min(16, t + 4) - (t + 1)
        e(f"  s_waitcnt vmcnt({7*rem})")
        for nt in range(4):
            e(f"  ds_read_b64_tr_b16 v[{40+4*nt}:{41+4*nt}], v{12+nt} offset:{sl*4096}")
            e(f"  ds_read_b64_tr_b16 v[{42+4*nt}:{43+4*nt}], v{12+nt} offset:{sl*4096+2048}")
        for nt in range(4):
            e(f"  s_waitcnt lgkmcnt({2*(3-nt)})")
            for mt in range(3):
                a = ACC + (mt*4+nt)*4
                A = AF + sl*12 + mt*4
                e(f"  v_mfma_f32_16x16x32_bf16 v[{a}:{a+3}], v[{A}:{A+3}], v[{40+4*nt}:{43+4*nt}], v[{a}:{a+3}]")
    e("  s_nop 7")
    e("  s_nop 1")
    e("  s_barrier")
    e("  s_mul_i32 s47, s34, 12288")
    e("  v_add_u32 v4, s47, v11")
    for tl in range(12):
        a = ACC + tl*4
        e(f"  ds_write_b128 v4, v[{a}:{a+3}] offset:{tl*1024}")
    e("  s_waitcnt lgkmcnt(0)")
    e("  s_barrier")
    e("  s_cmp_ge_u32 s34, 6")
    e("  s_cbranch_scc1 K2_END")
    e("  s_lshl_b32 s47, s34, 11")
    e("  v_add_u32 v4, s47, v11")
    e("  v_add_u32 v16, 49152, v4")
    e("  v_lshlrev_b32 v5, 2, v3")
    e("  s_mul_i32 s47, s33, 48")
    e("  v_add_u32 v5, s47, v5")
    e("  v_mul_u32_u24 v5, 1792, v5")
    e("  v_lshl_add_u32 v5, v2, 1, v5")
    e("  s_mul_i32 s47, s32, 896")
    e("  s_lshl_b32 s48, s31, 7")
    e("  s_add_u32 s47, s47, s48")
    e("  s_lshr_b32 s48, s34, 1          ; mt")
    e("  s_mul_i32 s48, s48, %d" % (16*1792))
    e("  s_add_u32 s47, s47, s48")
    e("  s_and_b32 s48, s34, 1")
    e("  s_lshl_b32 s48, s48, 6")
    e("  s_add_u32 s47, s47, s48")
    for r in range(4): e(f"  s_add_u32 s{50+r}, s47, {r*1792}")
    for u in range(2):
        for w in range(8):
            e(f"  ds_read_b128 v[{20+4*w}:{23+4*w}], v{4 if w<4 else 16} offset:{(w%4)*12288 + u*1024}")
        e("  s_waitcnt lgkmcnt(0)")
        for w in range(1, 8):
            for r in range(4): e(f"  v_add_f32 v{20+r}, v{20+r}, v{20+4*w+r}")
        e("  v_cvt_pk_bf16_f32 v6, v20, v21")
        e("  v_cvt_pk_bf16_f32 v7, v22, v23")
        e("  v_lshrrev_b32 v8, 16, v6")
        e("  v_lshrrev_b32 v9, 16, v7")
        for r, v in enumerate((6, 8, 7, 9)):
            e(f"  buffer_store_short v{v}, v5, s[12:15], s{50+r} offen offset:{u*32}")
    e("K2_END:")
    e("  s_endpgm")

def kd(name, vgpr):
    e(f".amdhsa_kernel {name}")
    e(f"  .amdhsa_next_free_vgpr {vgpr}")
    e("  .amdhsa_next_free_sgpr 102")
    e(f"  .amdhsa_accum_offset {vgpr}")
    e("  .amdhsa_group_segment_fixed_size 0")
    e("  .amdhsa_kernarg_size 104")
    e("  .amdhsa_user_sgpr_count 2")
    e("  .amdhsa_user_sgpr_kernarg_segment_ptr 1")
    e("  .amdhsa_system_sgpr_workgroup_id_x 1")
    e(".end_amdhsa_kernel")

hdr = open("concat_heads__gqa_block_cached__gqa_block_cached__near_ridge.s.ref").read().split("; Override launch")[0]
e(hdr.rstrip())
e("; @launch kernel=attn_kernel grid=(256,1,1) block=(512,1,1) lds=163840")
e("; @launch kernel=oproj_kernel grid=(224,1,1) block=(512,1,1) lds=131072")
e('.amdgcn_target "amdgcn-amd-amdhsa--gfx950"')
e(".text")
gen_k1()
gen_k2()
e('.section .rodata,"a"')
e(".p2align 6")
kd("attn_kernel", 160)
e(".p2align 6")
kd("oproj_kernel", 160)
open(sys.argv[1], "w").write("\n".join(L) + "\n")
```

```python
import sys
L = []
def e(s=""): L.append(s)

KERNARG_OUT, KERNARG_WS = 80, 96

TS = len(sys.argv) > 3
def stamp(k):
    if not TS: return
    e("  s_memrealtime s[70:71]")
    e("  s_waitcnt lgkmcnt(0)")
    e(f"  v_writelane_b32 v150, s70, {k}")
def gen_k1():
    e(".p2align 8")
    e(".globl attn_kernel")
    e(".type attn_kernel,@function")
    e("attn_kernel:")
    e("  s_cmp_ge_u32 s2, 256")
    e("  s_cbranch_scc1 K1_END")
    e("  s_and_b32 s64, s2, 7            ; xcd")
    e("  s_lshr_b32 s65, s2, 3           ; r")
    e("  s_and_b32 s32, s64, 1")
    e("  s_lshl_b32 s32, s32, 3")
    e("  s_and_b32 s29, s65, 7")
    e("  s_add_u32 s32, s32, s29         ; h")
    e("  s_lshr_b32 s28, s32, 1          ; hk")
    e("  s_lshr_b32 s30, s64, 1")
    e("  s_lshl_b32 s30, s30, 1")
    e("  s_bfe_u32 s29, s65, 0x10003")
    e("  s_add_u32 s30, s30, s29         ; bp")
    e("  s_lshr_b32 s31, s65, 4          ; side")
    e("  s_mul_i32 s33, s31, 40")
    e("  s_load_dwordx8 s[36:43], s[0:1], s33")
    e("  s_load_dwordx2 s[44:45], s[0:1], %d" % KERNARG_WS)
    e("  s_lshr_b32 s57, s64, 2")
    e("  s_mul_i32 s57, s57, 40")
    e("  s_load_dwordx2 s[58:59], s[0:1], s57 offset:32")
    e("  v_mov_b32 v140, v0")
    e("  v_lshrrev_b32 v1, 6, v0")
    e("  v_and_b32 v0, 63, v0            ; lane")
    e("  v_readfirstlane_b32 s34, v1")
    e("  s_waitcnt lgkmcnt(0)")
    for (d, src, n) in ((8, 36, 688128), (16, 38, 3145728), (20, 40, 3145728), (12, 42, 3670016), (24, 44, 12582912), (60, 58, 3670016)):
        e(f"  s_mov_b32 s{d}, s{src}")
        e(f"  s_mov_b32 s{d+1}, s{src+1}")
        e(f"  s_mov_b32 s{d+2}, {n}")
        e(f"  s_mov_b32 s{d+3}, 0x00020000")
    e("  v_and_b32 v2, 15, v0            ; i = l%16")
    e("  v_lshrrev_b32 v3, 4, v0         ; g = l/16")
    KB, SB, SBS, QB, VB = 0, 49152, 22528, 114688, 49152
    XS = 16384
    stamp(0)
    e("  ; K prefetch")
    e("  v_lshrrev_b32 v4, 5, v0         ; rr")
    e("  v_and_b32 v5, 31, v0            ; p")
    e("  s_mul_i32 s35, s34, 12")
    e("  s_lshl_b32 s46, s30, 1          ; 2bp")
    e("  s_lshl_b32 s46, s46, 3")
    e("  s_add_u32 s46, s46, s28         ; (2bp*8+hk)")
    e("  s_mul_i32 s46, s46, 24576")
    for j in range(6):
        e(f"  v_add_u32 v6, s35, v4")
        if j: e(f"  v_add_u32 v6, {2*j}, v6       ; R")
        e("  v_cmp_le_u32 vcc, 48, v6")
        e("  v_subrev_u32 v7, 48, v6")
        e("  s_nop 0")
        e("  v_cndmask_b32 v7, v6, v7, vcc   ; key")
        e("  v_mov_b32 v8, 0")
        e("  v_mov_b32 v9, 196608")
        e("  v_cndmask_b32 v8, v8, v9, vcc")
        e("  v_and_b32 v9, 15, v7")
        e("  v_xor_b32 v9, v5, v9            ; c")
        e("  v_lshlrev_b32 v9, 4, v9")
        e("  v_lshl_add_u32 v9, v7, 9, v9")
        e("  v_add_u32 v9, v9, v8")
        e(f"  s_mul_i32 s47, s34, 6144")
        e(f"  s_add_u32 s47, s47, {KB + j*1024}")
        e("  s_mov_b32 m0, s47")
        e("  s_nop 0")
        e("  buffer_load_dwordx4 v9, s[16:19], s46 offen lds")
    e("  s_cmp_ge_u32 s34, 6")
    e("  s_cselect_b32 s47, 6, 0")
    e("  s_sub_u32 s47, s34, s47         ; w%6")
    e("  s_lshl_b32 s48, s47, 4          ; rowbase")
    e("  v_lshrrev_b32 v4, 2, v0         ; row")
    e("  v_and_b32 v5, 3, v0")
    e("  v_bfe_u32 v6, v4, 1, 2")
    e("  v_xor_b32 v5, v5, v6            ; c")
    e("  s_mul_i32 s49, s30, 96")
    e("  s_add_u32 s49, s49, s48")
    e("  v_add_u32 v4, s49, v4")
    e("  v_mul_u32_u24 v4, 896, v4")
    e("  v_lshl_add_u32 v10, v5, 4, v4   ; vXoff")
    e("  s_lshl_b32 s48, s48, 6")
    e("  v_lshrrev_b32 v4, 5, v0         ; rr")
    e("  v_and_b32 v5, 31, v0")
    e("  s_lshl_b32 s50, s34, 2")
    for i in range(2):
        e(f"  v_add_u32 v6, s50, v4")
        if i: e(f"  v_add_u32 v6, 2, v6")
        e("  v_and_b32 v7, 3, v6")
        e("  v_bfe_u32 v8, v6, 3, 1")
        e("  v_lshl_or_b32 v7, v8, 2, v7")
        e("  v_lshlrev_b32 v7, 1, v7         ; swz")
        e("  v_xor_b32 v7, v5, v7            ; c")
        e("  v_lshlrev_b32 v7, 4, v7")
        e("  v_lshl_add_u32 v7, v6, 13, v7")
        e("  s_lshl_b32 s51, s32, 9")
        e(f"  v_add_u32 v{11+i}, s51, v7      ; vWoff{i}")
    e("  s_lshl_b32 s50, s34, 11")
    e("  s_lshr_b32 s69, s2, 3")
    e("  s_mul_i32 s69, s69, 114688")
    e("  s_lshl_b32 s47, s34, 10")
    e("  s_add_u32 s69, s69, s47")
    e("  v_lshlrev_b32 v141, 4, v0")
    def issue_stage(s):
        b = s % 4
        base = SB + b * SBS
        e(f"  s_mov_b32 s52, {s*262144}")
        e(f"  s_add_u32 s53, s50, {base}")
        e("  s_mov_b32 m0, s53")
        e(f"  s_mov_b32 s54, {s*64}")
        e("  buffer_load_dwordx4 v11, s[12:15], s52 offen lds")
        e(f"  s_add_u32 s53, s50, {base+1024}")
        e("  s_mov_b32 m0, s53")
        e("  s_nop 0")
        e("  buffer_load_dwordx4 v12, s[12:15], s52 offen lds")
        e(f"  s_add_u32 s53, s48, {base+XS}")
        e("  s_mov_b32 m0, s53")
        e("  s_nop 0")
        e("  buffer_load_dwordx4 v10, s[8:11], s54 offen lds")
        e("  buffer_load_dwordx4 v[144:147], v141, s[60:63], s69 offen")
        e("  s_add_u32 s69, s69, 8192")
    issue_stage(0); issue_stage(1); issue_stage(2)
    e("  s_and_b32 s55, s34, 1           ; mi")
    e("  s_lshr_b32 s56, s34, 1          ; ni")
    e("  v_bfe_u32 v4, v2, 1, 2")
    e("  v_xor_b32 v4, v3, v4")
    e("  v_lshlrev_b32 v4, 4, v4")
    e("  v_lshl_add_u32 v4, v2, 6, v4")
    e("  s_mul_i32 s47, s55, 3072")
    for b in range(1):
        e(f"  s_add_u32 s53, s47, {SB + b*SBS + XS}")
        e(f"  v_add_u32 v{56+b}, s53, v4")
    e("  v_lshrrev_b32 v4, 2, v2         ; j/4")
    e("  v_lshl_add_u32 v4, v3, 3, v4    ; row(half0)")
    for half in range(2):
        if half: e("  v_add_u32 v4, 4, v4")
        e("  v_and_b32 v5, 3, v4")
        e("  v_bfe_u32 v6, v4, 3, 1")
        e("  v_lshl_or_b32 v5, v6, 2, v5")
        e("  v_lshlrev_b32 v5, 1, v5         ; swz")
        e("  v_bfe_u32 v6, v2, 1, 1          ; (j%4)/2")
        e("  s_lshl_b32 s47, s56, 3")
        e("  v_add_u32 v6, s47, v6")
        e("  v_xor_b32 v5, v5, v6")
        e("  v_lshlrev_b32 v5, 4, v5")
        e("  v_lshl_add_u32 v5, v4, 9, v5")
        e("  v_and_b32 v6, 1, v2")
        e("  v_lshl_add_u32 v5, v6, 3, v5")
        for b in range(1):
            for mt in range(4):
                r = 16 + b*8 + half*4 + mt
                e(f"  v_xor_b32 v6, {mt*32}, v5")
                e(f"  v_add_u32 v{r}, {SB + b*SBS}, v6")
    ACC = 64
    for r in range(48): e(f"  v_mov_b32 v{ACC+r}, 0")
    FA, FB = 124, 112
    e("  s_mov_b32 s66, 0               ; stage")
    e("  s_mov_b32 s67, 0")
    e(f"  s_mov_b32 s68, {3*SBS}")
    e(f"  s_mov_b32 s52, {3*262144}")
    e(f"  s_mov_b32 s54, {3*64}")
    e("K1_LOOP:")
    e("  s_waitcnt vmcnt(9)")
    e("  s_barrier")
    if TS:
        e("  s_memrealtime s[70:71]")
        e("  s_waitcnt lgkmcnt(0)")
        e("  s_add_u32 m0, s66, 1")
        e("  s_nop 3")
        e("  v_writelane_b32 v150, s70, m0")
    e(f"  s_add_u32 s53, s50, s68")
    e(f"  s_add_u32 s53, s53, {SB}")
    e("  s_mov_b32 m0, s53")
    e("  v_add_u32 v57, s67, v56")
    e("  buffer_load_dwordx4 v11, s[12:15], s52 offen lds")
    e("  s_add_u32 s53, s53, 1024")
    e("  s_mov_b32 m0, s53")
    e(f"  s_add_u32 s53, s48, s68")
    e("  buffer_load_dwordx4 v12, s[12:15], s52 offen lds")
    e(f"  s_add_u32 s53, s53, {SB+XS}")
    e("  s_mov_b32 m0, s53")
    for r in range(8): e(f"  v_add_u32 v{24+r}, s67, v{16+r}")
    e("  buffer_load_dwordx4 v10, s[8:11], s54 offen lds")
    e("  buffer_load_dwordx4 v[144:147], v141, s[60:63], s69 offen")
    e("  s_add_u32 s69, s69, 8192")
    for nt in range(3):
        e(f"  ds_read_b128 v[{FB+4*nt}:{FB+4*nt+3}], v57 offset:{nt*1024}")
    for mt in range(4):
        for half in range(2):
            e(f"  ds_read_b64_tr_b16 v[{FA+4*mt+2*half}:{FA+4*mt+2*half+1}], v{24+half*4+mt}")
    e("  s_cmp_lg_u32 s66, 7")
    e("  s_cbranch_scc1 K1_NOPF")
    e("  v_lshlrev_b32 v5, 4, v140")
    for j in range(6):
        e(f"  s_add_u32 s47, s46, {(j//3)*196608 + (j%3)*8192}")
        e("  buffer_load_dwordx4 v[144:147], v5, s[20:23], s47 offen")
    e("K1_NOPF:")
    e("  s_add_u32 s52, s52, 262144")
    e("  s_add_u32 s54, s54, 64")
    e(f"  s_add_u32 s67, s67, {SBS}")
    e(f"  s_cmp_eq_u32 s67, {4*SBS}")
    e("  s_cselect_b32 s67, 0, s67")
    e(f"  s_add_u32 s68, s68, {SBS}")
    e(f"  s_cmp_eq_u32 s68, {4*SBS}")
    e("  s_cselect_b32 s68, 0, s68")
    for mt in range(4):
        e(f"  s_waitcnt lgkmcnt({2*(3-mt)})")
        for nt in range(3):
            a = ACC + (mt*3+nt)*4
            e(f"  v_mfma_f32_16x16x32_bf16 v[{a}:{a+3}], v[{FA+4*mt}:{FA+4*mt+3}], v[{FB+4*nt}:{FB+4*nt+3}], v[{a}:{a+3}]")
    e("  s_add_u32 s66, s66, 1")
    e("  s_cmp_lt_u32 s66, 14")
    e("  s_cbranch_scc1 K1_LOOP")
    e("  s_waitcnt vmcnt(0)")
    e("  s_barrier")
    stamp(15)
    e("  ; V loads")
    e("  v_lshrrev_b32 v4, 5, v0")
    e("  v_and_b32 v5, 31, v0")
    for j in range(6):
        e(f"  v_add_u32 v6, s35, v4")
        if j: e(f"  v_add_u32 v6, {2*j}, v6")
        e("  v_cmp_le_u32 vcc, 48, v6")
        e("  v_subrev_u32 v7, 48, v6")
        e("  s_nop 0")
        e("  v_cndmask_b32 v7, v6, v7, vcc")
        e("  v_mov_b32 v8, 0")
        e("  v_mov_b32 v9, 196608")
        e("  v_cndmask_b32 v8, v8, v9, vcc")
        e("  v_and_b32 v9, 7, v7")
        e("  v_lshlrev_b32 v9, 1, v9")
        e("  v_xor_b32 v9, v5, v9")
        e("  v_lshlrev_b32 v9, 4, v9")
        e("  v_lshl_add_u32 v9, v7, 9, v9")
        e("  v_add_u32 v9, v9, v8")
        e(f"  s_mul_i32 s47, s34, 6144")
        e(f"  s_add_u32 s47, s47, {VB + j*1024}")
        e("  s_mov_b32 m0, s47")
        e("  s_nop 0")
        e("  buffer_load_dwordx4 v9, s[20:23], s46 offen lds")
    e("  ; Q -> LDS")
    e("  v_lshrrev_b32 v4, 1, v3")
    e("  s_lshl_b32 s47, s56, 3")
    e("  v_add_u32 v4, s47, v4")
    e("  v_xor_b32 v4, v4, v2")
    e("  v_lshlrev_b32 v4, 4, v4")
    e("  v_lshl_add_u32 v4, v2, 9, v4")
    e("  v_and_b32 v5, 1, v3")
    e("  v_lshl_add_u32 v4, v5, 3, v4")
    e("  s_mul_i32 s47, s55, 24576")
    e(f"  s_add_u32 s47, s47, {QB}")
    e("  v_add_u32 v4, s47, v4")
    for mt in range(4):
        e(f"  v_xor_b32 v5, {mt*32}, v4")
        for nt in range(3):
            a = ACC + (mt*3+nt)*4
            e(f"  v_cvt_pk_bf16_f32 v6, v{a}, v{a+1}")
            e(f"  v_cvt_pk_bf16_f32 v7, v{a+2}, v{a+3}")
            e(f"  ds_write_b64 v5, v[6:7] offset:{nt*8192}")
    e("  s_waitcnt lgkmcnt(0)")
    e("  s_barrier")
    if len(sys.argv) == 3:
        e("  v_lshlrev_b32 v4, 4, v0")
        e("  s_lshl_b32 s47, s34, 10")
        e("  v_add_u32 v4, s47, v4")
        e(f"  v_add_u32 v5, {QB}, v4")
        e("  s_mul_i32 s53, s2, 49152")
        for j in range(6):
            e(f"  ds_read_b128 v[40:43], v5 offset:{j*8192}")
            e("  s_waitcnt lgkmcnt(0)")
            e(f"  buffer_store_dwordx4 v[40:43], v4, s[24:27], s53 offen")
            e("  s_add_u32 s53, s53, 8192")
        e("  s_branch K1_END")
    stamp(16)
    e("  s_cmp_ge_u32 s34, 6")
    e("  s_cbranch_scc1 K1_WOPF")
    e("  s_cmp_ge_u32 s34, 3")
    e("  s_cselect_b32 s55, 1, 0         ; bb")
    e("  s_mul_i32 s47, s55, 3")
    e("  s_sub_u32 s56, s34, s47         ; qt")
    e("  v_xor_b32 v4, v3, v2")
    e("  v_lshlrev_b32 v4, 4, v4")
    e("  v_lshl_add_u32 v4, v2, 9, v4")
    e("  s_mul_i32 s47, s55, 24576")
    e(f"  s_add_u32 s53, s47, {KB}")
    e("  v_add_u32 v5, s53, v4           ; K base")
    e("  s_lshl_b32 s53, s56, 13")
    e("  s_add_u32 s53, s53, s47")
    e(f"  s_add_u32 s53, s53, {QB}")
    e("  v_add_u32 v6, s53, v4           ; Q base")
    SA = 64
    for r in range(12): e(f"  v_mov_b32 v{SA+r}, 0")
    for ks in range(8):
        e(f"  v_xor_b32 v8, {ks*64}, v6")
        e(f"  ds_read_b128 v[{112+4*ks}:{115+4*ks}], v8")
    KF = 16
    for hf in range(2):
        for ks in range(4):
            e(f"  v_xor_b32 v7, {(hf*4+ks)*64}, v5")
            for kt in range(3):
                a = KF + (ks*3+kt)*4
                e(f"  ds_read_b128 v[{a}:{a+3}], v7 offset:{kt*8192}")
        for ks in range(4):
            e(f"  s_waitcnt lgkmcnt({3*(3-ks)})")
            for kt in range(3):
                a = KF + (ks*3+kt)*4
                q = 112 + 4*(hf*4+ks)
                c = SA + 4*kt
                e(f"  v_mfma_f32_16x16x32_bf16 v[{c}:{c+3}], v[{a}:{a+3}], v[{q}:{q+3}], v[{c}:{c+3}]")
    e("  s_nop 7")
    e("  s_nop 1")
    e("  v_max_f32 v9, v64, v65")
    for r in range(2, 12): e(f"  v_max_f32 v9, v9, v{SA+r}")
    e("  v_mov_b32 v10, v9")
    e("  s_nop 1")
    e("  v_permlane16_swap_b32 v9, v10")
    e("  v_max_f32 v9, v9, v10")
    e("  v_mov_b32 v10, v9")
    e("  s_nop 1")
    e("  v_permlane32_swap_b32 v9, v10")
    e("  v_max_f32 v9, v9, v10")
    e("  s_mov_b32 s47, 0x3db8aa3b       ; log2(e)/16")
    e("  v_mul_f32 v9, s47, v9")
    for r in range(12):
        e(f"  v_fma_f32 v{SA+r}, v{SA+r}, s47, -v9")
    for r in range(12):
        e(f"  v_exp_f32 v{SA+r}, v{SA+r}")
    e("  s_nop 0")
    e("  v_add_f32 v10, v64, v65")
    for r in range(2, 12): e(f"  v_add_f32 v10, v10, v{SA+r}")
    e("  v_mov_b32 v11, v10")
    e("  s_nop 1")
    e("  v_permlane16_swap_b32 v10, v11")
    e("  v_add_f32 v10, v10, v11")
    e("  v_mov_b32 v11, v10")
    e("  s_nop 1")
    e("  v_permlane32_swap_b32 v10, v11")
    e("  v_add_f32 v10, v10, v11")
    e("  v_rcp_f32 v10, v10")
    e("  s_nop 0")
    for r in range(12): e(f"  v_mul_f32 v{SA+r}, v{SA+r}, v10")
    for kt in range(3):
        e(f"  v_cvt_pk_bf16_f32 v{76+2*kt}, v{SA+4*kt}, v{SA+4*kt+1}")
        e(f"  v_cvt_pk_bf16_f32 v{77+2*kt}, v{SA+4*kt+2}, v{SA+4*kt+3}")
    e("  v_lshrrev_b32 v4, 2, v2")
    e("  v_lshl_add_u32 v4, v3, 2, v4    ; row 4g + j/4")
    e("  v_and_b32 v5, 7, v4")
    e("  v_lshlrev_b32 v5, 1, v5")
    e("  v_bfe_u32 v6, v2, 1, 1")
    e("  v_xor_b32 v5, v5, v6")
    e("  v_lshlrev_b32 v5, 4, v5")
    e("  v_lshl_add_u32 v5, v4, 9, v5")
    e("  v_and_b32 v6, 1, v2")
    e("  v_lshl_add_u32 v5, v6, 3, v5")
    e("  s_mul_i32 s47, s55, 24576")
    e(f"  s_add_u32 s47, s47, {VB}")
    e("  v_add_u32 v5, s47, v5           ; V base")
    e("  s_mul_i32 s47, s31, 48")
    e("  s_mul_i32 s53, s30, 6")
    e("  s_add_u32 s47, s47, s53")
    e("  s_add_u32 s47, s47, s34")
    e("  s_lshl_b32 s47, s47, 7")
    e("  s_lshl_b32 s53, s32, 3")
    e("  s_add_u32 s47, s47, s53")
    e("  s_lshl_b32 s47, s47, 10")
    e("  v_lshlrev_b32 v7, 4, v0")
    e("  s_waitcnt vmcnt(0)")
    e("  s_barrier")
    stamp(17)
    def vreads(grp):
        for u in range(4):
            dt = grp*4 + u
            A = 16 + (grp % 2)*24 + u*6
            e(f"  v_xor_b32 v6, {dt*32}, v5")
            e(f"  ds_read_b64_tr_b16 v[{A}:{A+1}], v6")
            e(f"  ds_read_b64_tr_b16 v[{A+2}:{A+3}], v6 offset:8192")
            e(f"  ds_read_b64_tr_b16 v[{A+4}:{A+5}], v6 offset:16384")
    vreads(0)
    for grp in range(4):
        if grp < 3:
            vreads(grp+1)
            e("  s_waitcnt lgkmcnt(12)")
        else:
            e("  s_waitcnt lgkmcnt(0)")
        OB = 112 + (grp % 2)*16
        for u in range(4):
            A = 16 + (grp % 2)*24 + u*6
            e(f"  v_mfma_f32_16x16x32_bf16 v[{OB+4*u}:{OB+4*u+3}], v[{A}:{A+3}], v[76:79], 0")
        e("  s_nop 1")
        for u in range(4):
            A = 16 + (grp % 2)*24 + u*6
            e(f"  v_mfma_f32_16x16x16_bf16 v[{OB+4*u}:{OB+4*u+3}], v[{A+4}:{A+5}], v[80:81], v[{OB+4*u}:{OB+4*u+3}]")
        e("  s_nop 7")
        for pr in range(2):
            P = 84 + (grp % 2)*8 + pr*4
            o = OB + pr*8
            for k in range(4):
                e(f"  v_cvt_pk_bf16_f32 v{P+k}, v{o+2*k}, v{o+2*k+1}")
            e(f"  buffer_store_dwordx4 v[{P}:{P+3}], v7, s[24:27], s47 offen")
            e("  s_add_u32 s47, s47, 1024")
    stamp(18)
    if TS:
        e("  s_cmp_lg_u32 s34, 0")
        e("  s_cbranch_scc1 K1_END")
        e("  v_lshlrev_b32 v4, 2, v0")
        e("  s_lshl_b32 s47, s2, 8")
        e("  s_add_u32 s47, s47, 12000000")
        e("  buffer_store_dword v150, v4, s[24:27], s47 offen")
    e("  s_branch K1_END")
    e("K1_WOPF:")
    e("  s_waitcnt vmcnt(0)")
    e("  s_barrier")
    e("K1_END:")
    e("  s_waitcnt vmcnt(0)")
    e("  s_endpgm")


def gen_k2():
    e(".p2align 8")
    e(".globl oproj_kernel")
    e(".type oproj_kernel,@function")
    e("oproj_kernel:")
    e("  s_cmp_ge_u32 s2, 224")
    e("  s_cbranch_scc1 K2_END")
    e("  s_and_b32 s28, s2, 7            ; x")
    e("  s_lshr_b32 s29, s2, 3           ; 0..27")
    e("  s_mov_b32 s30, 0")
    for t in range(1, 4):
        e(f"  s_cmp_ge_u32 s29, {7*t}")
        e(f"  s_cselect_b32 s30, {t}, s30    ; rg_local")
    e("  s_mul_i32 s31, s30, 7")
    e("  s_sub_u32 s31, s29, s31         ; cg")
    e("  s_lshr_b32 s32, s28, 2          ; side")
    e("  s_and_b32 s33, s28, 3")
    e("  s_lshl_b32 s33, s33, 2")
    e("  s_add_u32 s33, s33, s30         ; rg (0..15)")
    e("  s_mul_i32 s35, s32, 40")
    e("  s_load_dwordx2 s[36:37], s[0:1], s35 offset:32   ; wo")
    e("  s_load_dwordx2 s[38:39], s[0:1], %d" % KERNARG_OUT)
    e("  s_load_dwordx2 s[40:41], s[0:1], %d" % KERNARG_WS)
    e("  v_lshrrev_b32 v1, 6, v0")
    e("  v_and_b32 v0, 63, v0")
    e("  v_readfirstlane_b32 s34, v1")
    e("  s_waitcnt lgkmcnt(0)")
    for (d, src, n) in ((8, 36, 3670016), (12, 38, 1376256), (16, 40, 12582912)):
        e(f"  s_mov_b32 s{d}, s{src}")
        e(f"  s_mov_b32 s{d+1}, s{src+1}")
        e(f"  s_mov_b32 s{d+2}, {n}")
        e(f"  s_mov_b32 s{d+3}, 0x00020000")
    e("  v_and_b32 v2, 15, v0")
    e("  v_lshrrev_b32 v3, 4, v0")
    e("  v_lshrrev_b32 v4, 3, v0")
    e("  v_and_b32 v5, 7, v0")
    e("  v_bfe_u32 v6, v4, 1, 2")
    e("  v_lshlrev_b32 v6, 1, v6")
    e("  v_xor_b32 v5, v5, v6")
    e("  v_mul_u32_u24 v4, 896, v4")
    e("  v_lshl_add_u32 v4, v5, 4, v4")
    e("  s_lshl_b32 s42, s31, 7")
    e("  v_add_u32 v10, s42, v4")
    e("  s_mul_i32 s43, s34, %d          ; wave k base bytes" % (16*32*896))
    e("  s_lshl_b32 s44, s34, 14")
    e("  v_lshlrev_b32 v11, 4, v0")
    e("  s_mul_i32 s45, s32, 48")
    e("  s_mul_i32 s46, s33, 3")
    e("  s_add_u32 s45, s45, s46")
    e("  s_lshl_b32 s45, s45, 7")
    e("  s_lshl_b32 s46, s34, 4")
    e("  s_add_u32 s45, s45, s46")
    e("  s_lshl_b32 s45, s45, 10")
    e("  v_lshrrev_b32 v4, 2, v2")
    e("  v_lshl_add_u32 v4, v3, 2, v4")
    e("  v_bfe_u32 v5, v4, 1, 2")
    e("  v_lshlrev_b32 v5, 1, v5")
    e("  v_bfe_u32 v6, v2, 1, 1")
    e("  v_xor_b32 v5, v5, v6")
    e("  v_lshlrev_b32 v5, 4, v5")
    e("  v_lshl_add_u32 v5, v4, 7, v5")
    e("  v_and_b32 v6, 1, v2")
    e("  v_lshl_add_u32 v5, v6, 3, v5")
    e("  v_add_u32 v5, s44, v5")
    for nt in range(4): e(f"  v_xor_b32 v{12+nt}, {nt*32}, v5")
    ACC = 64
    for r in range(48): e(f"  v_mov_b32 v{ACC+r}, 0")
    AF = 112
    def issue(t):
        sl = t % 4
        e(f"  s_add_u32 s47, s43, {t*32*896}")
        for q in range(4):
            e(f"  s_add_u32 s48, s44, {sl*4096 + q*1024}")
            e("  s_mov_b32 m0, s48")
            e(f"  s_add_u32 s49, s47, {q*8*896}")
            e("  buffer_load_dwordx4 v10, s[8:11], s49 offen lds")
        e(f"  s_add_u32 s47, s45, {t*1024}")
        for mt in range(3):
            a = AF + sl*12 + mt*4
            if mt: e(f"  s_add_u32 s47, s47, {128*1024}")
            e(f"  buffer_load_dwordx4 v[{a}:{a+3}], v11, s[16:19], s47 offen")
    for t in range(3): issue(t)
    for t in range(16):
        sl = t % 4
        if t + 3 < 16: issue(t + 3)
        rem = min(16, t + 4) - (t + 1)
        e(f"  s_waitcnt vmcnt({7*rem})")
        for nt in range(4):
            e(f"  ds_read_b64_tr_b16 v[{40+4*nt}:{41+4*nt}], v{12+nt} offset:{sl*4096}")
            e(f"  ds_read_b64_tr_b16 v[{42+4*nt}:{43+4*nt}], v{12+nt} offset:{sl*4096+2048}")
        for nt in range(4):
            e(f"  s_waitcnt lgkmcnt({2*(3-nt)})")
            for mt in range(3):
                a = ACC + (mt*4+nt)*4
                A = AF + sl*12 + mt*4
                e(f"  v_mfma_f32_16x16x32_bf16 v[{a}:{a+3}], v[{A}:{A+3}], v[{40+4*nt}:{43+4*nt}], v[{a}:{a+3}]")
    e("  s_nop 7")
    e("  s_nop 1")
    e("  s_barrier")
    e("  s_mul_i32 s47, s34, 12288")
    e("  v_add_u32 v4, s47, v11")
    for tl in range(12):
        a = ACC + tl*4
        e(f"  ds_write_b128 v4, v[{a}:{a+3}] offset:{tl*1024}")
    e("  s_waitcnt lgkmcnt(0)")
    e("  s_barrier")
    e("  s_cmp_ge_u32 s34, 6")
    e("  s_cbranch_scc1 K2_END")
    e("  s_lshl_b32 s47, s34, 11")
    e("  v_add_u32 v4, s47, v11")
    e("  v_add_u32 v16, 49152, v4")
    e("  v_lshlrev_b32 v5, 2, v3")
    e("  s_mul_i32 s47, s33, 48")
    e("  v_add_u32 v5, s47, v5")
    e("  v_mul_u32_u24 v5, 1792, v5")
    e("  v_lshl_add_u32 v5, v2, 1, v5")
    e("  s_mul_i32 s47, s32, 896")
    e("  s_lshl_b32 s48, s31, 7")
    e("  s_add_u32 s47, s47, s48")
    e("  s_lshr_b32 s48, s34, 1          ; mt")
    e("  s_mul_i32 s48, s48, %d" % (16*1792))
    e("  s_add_u32 s47, s47, s48")
    e("  s_and_b32 s48, s34, 1")
    e("  s_lshl_b32 s48, s48, 6")
    e("  s_add_u32 s47, s47, s48")
    for r in range(4): e(f"  s_add_u32 s{50+r}, s47, {r*1792}")
    for u in range(2):
        for w in range(8):
            e(f"  ds_read_b128 v[{20+4*w}:{23+4*w}], v{4 if w<4 else 16} offset:{(w%4)*12288 + u*1024}")
        e("  s_waitcnt lgkmcnt(0)")
        for w in range(1, 8):
            for r in range(4): e(f"  v_add_f32 v{20+r}, v{20+r}, v{20+4*w+r}")
        e("  v_cvt_pk_bf16_f32 v6, v20, v21")
        e("  v_cvt_pk_bf16_f32 v7, v22, v23")
        e("  v_lshrrev_b32 v8, 16, v6")
        e("  v_lshrrev_b32 v9, 16, v7")
        for r, v in enumerate((6, 8, 7, 9)):
            e(f"  buffer_store_short v{v}, v5, s[12:15], s{50+r} offen offset:{u*32}")
    e("K2_END:")
    e("  s_endpgm")

def kd(name, vgpr):
    e(f".amdhsa_kernel {name}")
    e(f"  .amdhsa_next_free_vgpr {vgpr}")
    e("  .amdhsa_next_free_sgpr 102")
    e(f"  .amdhsa_accum_offset {vgpr}")
    e("  .amdhsa_group_segment_fixed_size 0")
    e("  .amdhsa_kernarg_size 104")
    e("  .amdhsa_user_sgpr_count 2")
    e("  .amdhsa_user_sgpr_kernarg_segment_ptr 1")
    e("  .amdhsa_system_sgpr_workgroup_id_x 1")
    e(".end_amdhsa_kernel")

hdr = open("concat_heads__gqa_block_cached__gqa_block_cached__near_ridge.s.ref").read().split("; Override launch")[0]
e(hdr.rstrip())
e("; @launch kernel=attn_kernel grid=(256,1,1) block=(512,1,1) lds=163840")
e("; @launch kernel=oproj_kernel grid=(224,1,1) block=(512,1,1) lds=131072")
e('.amdgcn_target "amdgcn-amd-amdhsa--gfx950"')
e(".text")
gen_k1()
gen_k2()
e('.section .rodata,"a"')
e(".p2align 6")
kd("attn_kernel", 160)
e(".p2align 6")
kd("oproj_kernel", 160)
open(sys.argv[1], "w").write("\n".join(L) + "\n")
```
